```python
import torch

def _softmax(x, axis=-1):
    return torch.softmax(x, dim=axis)
def _gelu(x):
    return torch.nn.functional.gelu(x, approximate="tanh")
def _silu(x):
    return torch.nn.functional.silu(x)
def _sigmoid(x):
    return torch.sigmoid(x)
def _layernorm(x, axis=-1, eps=1e-5):
    m = x.mean(dim=axis, keepdim=True)
    v = x.var(dim=axis, keepdim=True, unbiased=False)
    return (x - m) / torch.sqrt(v + eps)
def _scatter_add(tgt, idx, src, axis=0):
    return tgt.clone().index_add_(axis, idx, src)
def _segment_sum(src, seg, n):
    out = torch.zeros((n,) + src.shape[1:], dtype=src.dtype)
    return out.index_add_(0, seg, src)
def _pad(x, pw):
    flat = tuple(v for pair in reversed(pw) for v in pair)
    return torch.nn.functional.pad(x, flat)

kernel_name = 'parallel_sum__linear_attn_block__dense_activation_gelu__prompt'

def setup_inputs():

    _w = (lambda a: (lambda t: t.to(torch.bfloat16) if t.is_floating_point() else t)(torch.as_tensor(a)))
    def _A_setup():
        B, S, D = 1, 2048, 512
        return {
            "x": _w((lambda *s: torch.randn(*s, dtype=torch.bfloat16) * 0.05)(B, S, D)),
            "wqkv": _w((lambda *s: torch.randn(*s, dtype=torch.bfloat16) * 0.05)(D, 3 * D)),
            "wo": _w((lambda *s: torch.randn(*s, dtype=torch.bfloat16) * 0.05)(D, D)),
        }
    _A_in = _A_setup()

    def _B_setup():
        B, S, D, F = 1, 2048, 512, 1376
        return {
            "x": _w((lambda *s: torch.randn(*s, dtype=torch.bfloat16) * 0.05)(B, S, D)),
            "w1": _w((lambda *s: torch.randn(*s, dtype=torch.bfloat16) * 0.4)(D, F) * (D ** -0.5)),
            "b1": _w((lambda *s: torch.randn(*s, dtype=torch.bfloat16) * 12.8)(F) * 0.01),
            "w2": _w((lambda *s: torch.randn(*s, dtype=torch.bfloat16) * 0.1)(F, D) * (F ** -0.5)),
            "b2": _w((lambda *s: torch.randn(*s, dtype=torch.bfloat16) * 1.6)(D) * 0.01),
        }
    _B_in = _B_setup()

    return {
        "A_x": _A_in["x"],
        "A_wqkv": _A_in["wqkv"],
        "A_wo": _A_in["wo"],
        "B_x": _B_in["x"],
        "B_w1": _B_in["w1"],
        "B_b1": _B_in["b1"],
        "B_w2": _B_in["w2"],
        "B_b2": _B_in["b2"],
    }

def reference(A_x, A_wqkv, A_wo, B_x, B_w1, B_b1, B_w2, B_b2):
    def _A_ref(x, wqkv, wo):
        B, S, D = x.shape
        H = 32; Dh = D // H
        qkv = (lambda x, *d: x.permute(*d))((x @ wqkv).reshape(B, S, 3, H, Dh), 2, 0, 3, 1, 4)
        q, k, v = qkv[0], qkv[1], qkv[2]
        phi = lambda t: torch.where(t > 0, t + 1, torch.exp(t)) + 1e-6
        pq, pk = phi(q), phi(k)
        kv = torch.einsum("bhsd,bhse->bhde", pk, v)
        z = torch.einsum("bhsd->bhd", pk)
        num = torch.einsum("bhqd,bhde->bhqe", pq, kv)
        den = torch.einsum("bhqd,bhd->bhq", pq, z)[..., None] + 1e-6
        o = num / den
        return (lambda x, *d: x.permute(*d))(o, 0, 2, 1, 3).reshape(B, S, D) @ wo

    def _B_ref(x, w1, b1, w2, b2):
        h = torch.einsum("bsd,df->bsf", x, w1) + b1
        h = _gelu(h)
        return torch.einsum("bsf,fd->bsd", h, w2) + b2

    x = A_x
    xn = _layernorm(x, axis=-1)
    return x + _A_ref(xn, A_wqkv, A_wo) + _B_ref(xn, B_w1, B_b1, B_w2, B_b2)
```

```python
import re

REG_RE = re.compile(r'^(v|s|a)(\d+)$')
RNG_RE = re.compile(r'^(v|s|a)\[(\d+):(\d+)\]$')

def regs_of(op):
    op = op.strip()
    neg = op.lstrip('-')
    if neg.startswith('abs(') and neg.endswith(')'): neg = neg[4:-1]
    if neg.startswith('|') and neg.endswith('|'): neg = neg[1:-1]
    m = REG_RE.match(neg)
    if m: return {(m.group(1), int(m.group(2)))}
    m = RNG_RE.match(neg)
    if m: return {(m.group(1), r) for r in range(int(m.group(2)), int(m.group(3)) + 1)}
    if neg == 'vcc': return {('s', 'vcc')}
    if neg in ('vcc_lo', 'vcc_hi'): return {('s', 'vcc')}
    if neg == 'exec': return {('s', 'exec')}
    if neg == 'm0': return {('s', 'm0')}
    return set()

TRANS = ('v_exp_f32', 'v_log_f32', 'v_rcp_f32', 'v_rsq_f32', 'v_sqrt_f32', 'v_sin_f32', 'v_cos_f32', 'v_rcp_iflag_f32')

class Ins:
    __slots__ = ('text', 'mn', 'ops', 'w', 'r', 'kind', 'passes', 'nop', 'srcc', 'srcab', 'mods')
    def __init__(self, text):
        self.text = text
        t = text.split(';')[0].strip()
        parts = t.split(None, 1)
        self.mn = parts[0]
        rest = parts[1] if len(parts) > 1 else ''
        ops = []; cur = ''; depth = 0
        for ch in rest:
            if ch in '[(': depth += 1
            if ch in '])': depth -= 1
            if ch == ',' and depth == 0: ops.append(cur.strip()); cur = ''
            else: cur += ch
        if cur.strip(): ops.append(cur.strip())
        mods = ''
        if ops:
            sp = ops[-1].split(None, 1)
            if len(sp) > 1 and not ops[-1].startswith('hwreg'):
                ops[-1] = sp[0]; mods = sp[1]
        self.ops = ops; self.mods = mods
        self.w = set(); self.r = set(); self.passes = 0; self.nop = 1; self.srcc = set(); self.srcab = set()
        mn = self.mn
        base = re.sub(r'_(e32|e64|dpp|sdwa)$', '', mn)
        R = lambda i: regs_of(ops[i]) if i < len(ops) else set()
        if mn == 's_nop':
            self.kind = 'nop'; self.nop = int(ops[0], 0) + 1
        elif mn.startswith('v_mfma'):
            self.kind = 'mfma'
            self.passes = 8 if '32x32' in mn else 4
            self.w = R(0); self.srcab = R(1) | R(2); self.srcc = R(3); self.r = self.srcab | self.srcc
        elif mn.startswith('v_'):
            self.kind = 'valu'
            if base in TRANS: self.kind = 'trans'
            if base.startswith('v_dot2'): self.kind = 'dot'
            if base.startswith('v_permlane'):
                self.kind = 'perm'; self.w = R(0) | R(1); self.r = R(0) | R(1)
            elif base.startswith('v_readfirstlane') or base.startswith('v_readlane'):
                self.kind = 'rdlane'; self.w = R(0); self.r = R(1) | R(2)
            elif base.startswith('v_cmp'):
                self.w = R(0); self.r = R(1) | R(2)
            else:
                self.w = R(0)
                for i in range(1, len(ops)): self.r |= R(i)
                if base in ('v_fmac_f32', 'v_dot2c_f32_bf16', 'v_pk_fmac_f16', 'v_writelane_b32', 'v_bfi_b32'): self.r |= R(0) if base != 'v_bfi_b32' else set()
                if base == 'v_cndmask_b32' and len(ops) == 3: self.r |= {('s', 'vcc')}
                if base in ('v_add_co_u32', 'v_sub_co_u32', 'v_addc_co_u32'): self.w |= R(1)
            if 'row_' in mods or 'quad_perm' in mods or mn.endswith('_dpp'): self.kind = 'dpp' if self.kind == 'valu' else self.kind
        elif mn.startswith('ds_'):
            self.kind = 'ds'
            if mn.startswith('ds_read') or mn.startswith('ds_bpermute') or mn.startswith('ds_swizzle') or '_rtn_' in mn:
                self.w = R(0)
                for i in range(1, len(ops)): self.r |= R(i)
            else:
                for i in range(len(ops)): self.r |= R(i)
        elif mn.startswith('buffer_') or mn.startswith('global_'):
            self.kind = 'vmem'
            lds = bool(re.search(r'\blds\b', mods))
            if mn in ('buffer_inv', 'buffer_wbl2'):
                pass
            elif 'load' in mn and not lds:
                self.w = R(0)
                for i in range(1, len(ops)): self.r |= R(i)
            elif 'load' in mn and lds:
                self.kind = 'dma'
                for i in range(len(ops)): self.r |= R(i)
                self.r |= {('s', 'm0')}
            elif 'atomic' in mn and 'sc0' in mods:
                self.w = R(0)
                for i in range(len(ops)): self.r |= R(i)
            else:
                for i in range(len(ops)): self.r |= R(i)
        elif mn.startswith('s_'):
            self.kind = 'salu'
            if mn.startswith('s_cmp') or mn.startswith('s_cbranch') or mn in ('s_branch', 's_waitcnt', 's_barrier', 's_endpgm', 's_sleep', 's_setprio', 's_bitcmp1_b32', 's_bitcmp0_b32'):
                for i in range(len(ops)): self.r |= R(i)
                if mn in ('s_cbranch_vccz', 's_cbranch_vccnz'): self.r |= {('s', 'vcc')}
            else:
                self.w = R(0)
                for i in range(1, len(ops)): self.r |= R(i)
                if 'saveexec' in mn: self.w |= {('s', 'exec')}
        else:
            raise ValueError('unknown instr ' + text)
    def is_valu(self): return self.kind in ('valu', 'trans', 'dot', 'perm', 'rdlane', 'dpp')
    def wide_store(self):
        return self.kind == 'vmem' and 'store' in self.mn and ('x3' in self.mn or 'x4' in self.mn)
    def store_data(self):
        if self.mn.startswith('buffer_store'): return regs_of(self.ops[0])
        if self.mn.startswith('global_store'): return regs_of(self.ops[1])
        return set()

def vonly(s): return {x for x in s if x[0] in 'va'}
def sonly(s): return {x for x in s if x[0] == 's'}

def need(p, c):
    n = 0
    pv = vonly(p.w); ps = sonly(p.w)
    if p.kind == 'mfma':
        big = {8: 12, 4: 8}[p.passes]
        if c.kind == 'mfma':
            if c.srcab & pv: n = max(n, big)
            if c.srcc & pv:
                if not (c.srcc == pv and c.passes == p.passes): n = max(n, {8: 10, 4: 6}[p.passes])
            if (c.w & pv) and not (c.srcc & pv): n = max(n, big)
        else:
            if (vonly(c.r) | vonly(c.w)) & pv: n = max(n, big)
        if c.is_valu() and (vonly(c.w) & vonly(p.srcc)): n = max(n, {8: 7, 4: 3}[p.passes])
    if p.is_valu():
        if c.kind == 'mfma' and (c.r & pv): n = max(n, 2 if p.kind != 'dot' else 3)
        if p.kind == 'trans' and c.is_valu() and c.kind != 'trans' and (vonly(c.r) & pv): n = max(n, 1)
        if p.kind == 'trans' and c.kind == 'trans' and (vonly(c.r) & pv): n = max(n, 1)
        if p.kind == 'trans' and c.kind in ('ds', 'vmem', 'dma') and (vonly(c.r) & pv): n = max(n, 1)
        if c.kind == 'perm' and (vonly(c.r) & pv): n = max(n, 2)
        if c.kind == 'dpp' and (vonly(c.r) & pv): n = max(n, 2)
        if c.kind == 'rdlane' and (vonly(c.r) & pv): n = max(n, 1)
        if p.kind == 'dot':
            if c.kind == 'dot':
                if c.mn == p.mn:
                    ab = regs_of(c.ops[1]) | regs_of(c.ops[2])
                    if ab & pv: n = max(n, 3)
                elif (vonly(c.r) | vonly(c.w)) & pv: n = max(n, 3)
            elif (vonly(c.r) | vonly(c.w)) & pv: n = max(n, 3)
        if ps:
            if c.is_valu() and (sonly(c.r) & ps): n = max(n, 2)
            if c.kind == 'rdlane' and (sonly(c.r) & ps): n = max(n, 4)
            if c.kind in ('vmem', 'dma') and (sonly(c.r) & ps): n = max(n, 5)
            if c.kind == 'salu' and (sonly(c.r) & ps): n = max(n, 2)
    if p.wide_store():
        d = vonly(p.store_data())
        if c.is_valu() and (vonly(c.w) & d): n = max(n, 2)
        elif (vonly(c.w) & d): n = max(n, 1)
    if p.kind == 'salu' and ('s', 'm0') in p.w and c.kind == 'dma': n = max(n, 1)
    if p.kind == 'salu' and ('s', 'exec') in p.w and c.kind in ('dpp',): n = max(n, 1)
    return n

class Prog:
    def __init__(self):
        self.items = []
    def I(self, text):
        for line in text.split('\n'):
            line = line.strip()
            if not line or line.startswith(';'): continue
            if line.endswith(':'): self.items.append(('l', line[:-1]))
            else: self.items.append(('i', Ins(line)))
    def L(self, name): self.items.append(('l', name))
    def C(self, text): self.items.append(('r', '    ; ' + text))
    def raw(self, text): self.items.append(('r', text))
    def _pad_linear(self):
        out = []; hist = []
        nins = 0
        for it in self.items:
            if it[0] != 'i':
                out.append(it); continue
            c = it[1]
            req = 0; dist = 0
            for p in reversed(hist):
                nn = need(p, c)
                if nn > dist: req = max(req, nn - dist)
                dist += p.nop
                if dist >= 24: break
            while req > 0:
                k = min(req, 16)
                nop = Ins(f's_nop {k-1}')
                out.append(('i', nop)); hist.append(nop); req -= k; nins += 1
            out.append(it); hist.append(c)
            if c.mn in ('s_branch', 's_endpgm'): hist = []
            if len(hist) > 40: hist = hist[-40:]
        self.items = out
        return nins
    def _pad_branches(self):
        labels = {it[1]: i for i, it in enumerate(self.items) if it[0] == 'l'}
        fix = {}
        for i, it in enumerate(self.items):
            if it[0] == 'i' and (it[1].mn.startswith('s_cbranch') or it[1].mn == 's_branch'):
                tgt = it[1].ops[0]
                if tgt not in labels: raise ValueError('missing label ' + tgt)
                prev = []
                j = i; d = 0
                while j >= 0 and d < 24:
                    if self.items[j][0] == 'i':
                        prev.append(self.items[j][1]); d += self.items[j][1].nop
                        if j < i and self.items[j][1].mn in ('s_branch', 's_endpgm'): break
                    j -= 1
                j = labels[tgt] + 1; after = []; d = 0
                while j < len(self.items) and d < 24:
                    if self.items[j][0] == 'i':
                        after.append(self.items[j][1]); d += self.items[j][1].nop
                        if self.items[j][1].mn in ('s_branch', 's_endpgm'): break
                    j += 1
                req = 0
                da = 0
                for c in after:
                    dist = da
                    for p in prev:
                        nn = need(p, c)
                        if nn > dist: req = max(req, nn - dist)
                        dist += p.nop
                    da += c.nop
                if req: fix[tgt] = max(fix.get(tgt, 0), req)
        if fix:
            out = []
            for it in self.items:
                out.append(it)
                if it[0] == 'l' and it[1] in fix:
                    req = fix[it[1]]
                    while req > 0:
                        k = min(req, 16); out.append(('i', Ins(f's_nop {k-1}'))); req -= k
            self.items = out
        return fix
    def text(self):
        n = self._pad_linear()
        fix = self._pad_branches()
        self._pad_linear()
        s = []
        for it in self.items:
            if it[0] == 'i': s.append('    ' + it[1].text)
            elif it[0] == 'l': s.append(it[1] + ':')
            else: s.append(it[1])
        self.stats = dict(nops=n, branchfix=fix, ninstr=sum(1 for it in self.items if it[0] == 'i'))
        return '\n'.join(s) + '\n'
```

```python
import sys
sys.path.insert(0, 'dev')
from asmlib import Prog

NAME = 'parallel_sum__linear_attn_block__dense_activation_gelu__prompt'

FS = 32
WS_F1 = 0x1000
WS_FK = 0x9000
WS_FR = 0xD000
WS_KVF = 0x10000
WS_ZP = 0x18000
WS_KVP = 0x30000
WS_PQ = 0x200000
WS_HF = 0x400000
WS_TS = 0xA00000
WS_DBG = 0xB00000
WS_SIZE = 0x1000000
HF_IB = 86 * 2048
PQ_IB = 32 * 2048
SLOT = 40960
MISC = 3 * SLOT
L_FULL = MISC
L_FREE = MISC + 64
L_ISS = MISC + 128
L_SCNT = MISC + 132
L_RS = MISC + 256
L_CS = MISC + 2304
L_RSTD = MISC + 3840
MSEG = MISC + 8192
LDS_SIZE = 163840

SPIN_MAX = 1 << 22

class Cfg:
    rot = 'i2j'
    ts = False
    fullpt = 20
    stop_after = None
    fullwait0 = False
    dbgstats = False

def ts(p, cfg, idx, sreg=90):
    if not cfg.ts: return
    p.I(f"""
        s_memrealtime s[90:91]
        s_lshl_b32 s92, s2, 3
        s_add_u32 s92, s92, s3
        s_lshl_b32 s92, s92, 7
        s_add_u32 s92, s92, {WS_TS + idx*8}
        s_waitcnt lgkmcnt(0)
        v_mov_b32 v250, s90
        v_mov_b32 v251, s91
        v_mov_b32 v252, 0
    """) if False else None

class TS:
    def __init__(self, cfg): self.on = cfg.ts
    def stamp(self, p, idx):
        if not self.on: return
        p.I(f"s_memrealtime s[{86+2*idx}:{87+2*idx}]")

def srd(p, d, lo, size):
    p.I(f"""s_mov_b32 s{d}, s{lo}
            s_and_b32 s{d+1}, s{lo+1}, 0xffff
            s_mov_b32 s{d+2}, {size}
            s_mov_b32 s{d+3}, 0x20000""")

def spin_lds_ge(p, name, vaddr, off, val, vt='v1', st='s44', cnt='s45'):
    p.I(f"""s_mov_b32 {cnt}, 0
        {name}_sp:
            ds_read_b32 {vt}, {vaddr} offset:{off}
            s_add_u32 {cnt}, {cnt}, 1
            s_waitcnt lgkmcnt(0)
            v_readfirstlane_b32 {st}, {vt}
            s_cmp_ge_u32 {cnt}, {SPIN_MAX}
            s_cbranch_scc1 {name}_ok
            s_cmp_ge_u32 {st}, {val}
            s_cbranch_scc0 {name}_sp
        {name}_ok:""")

def poll_flags(p, name, vaddr, vd, nl, sleep=1):
    mask = (1 << nl) - 1
    p.I(f"""s_mov_b32 s45, 0
        {name}_pl:
            buffer_load_dwordx2 v[{vd}:{vd+1}], {vaddr}, s[28:31], 0 offen sc1
            s_add_u32 s45, s45, 1
            s_waitcnt vmcnt(0)
            v_cmp_ne_u32 vcc, s42, v{vd}
            v_cmp_ne_u32 s[46:47], s43, v{vd+1}
            s_or_b64 vcc, vcc, s[46:47]""")
    if nl < 64:
        lo = mask & 0xffffffff; hi = mask >> 32
        p.I(f"""s_and_b32 vcc_lo, vcc_lo, {hex(lo)}
                s_and_b32 vcc_hi, vcc_hi, {hex(hi)}""")
    p.I(f"""s_cmp_eq_u64 vcc, 0
            s_cbranch_scc1 {name}_ok
            s_cmp_ge_u32 s45, {SPIN_MAX >> 4}
            s_cbranch_scc1 {name}_ok
            s_sleep {sleep}
            s_branch {name}_pl
        {name}_ok:""")

def write_flag(p, soff):
    p.I(f"""v_mov_b32 v60, s42
            v_mov_b32 v61, s43
            v_mov_b32 v62, 0
            s_mov_b64 exec, 1
            buffer_store_dwordx2 v[60:61], v62, s[28:31], {soff} offen sc1
            s_mov_b64 exec, -1""")

def build(cfg=Cfg()):
    p = Prog()
    T = TS(cfg)
    K = f'{NAME}_kernel'
    p.raw(open('cdna_kernels/%s.s.ref' % NAME).read().split('; Override launch')[0].rstrip())
    p.raw('; Override launch geometry by editing the next line (default: block=256,')
    p.raw(f'; @launch grid=(256,1,1) block=(512,1,1) lds={LDS_SIZE}')
    p.raw('.amdgcn_target "amdgcn-amd-amdhsa--gfx950"\n.text')
    p.raw(f'.globl {K}\n.p2align 8\n.type {K},@function')
    p.L(K)
    p.I(f"""
        s_cmp_ge_u32 s2, 256
        s_cbranch_scc1 L_END
        s_load_dwordx16 s[64:79], s[0:1], 0
        s_load_dwordx2 s[80:81], s[0:1], 64
        s_load_dwordx2 s[84:85], s[0:1], 80
    """)
    T.stamp(p, 0)
    p.I(f"""
        v_lshrrev_b32 v1, 6, v0
        v_and_b32 v0, 63, v0
        v_readfirstlane_b32 s3, v1
        s_and_b32 s44, s2, 7
        s_lshr_b32 s45, s2, 3
        s_lshr_b32 s46, s44, 2
        s_lshl_b32 s46, s46, 3
        s_and_b32 s47, s45, 7
        s_add_u32 s4, s46, s47
        s_lshr_b32 s46, s45, 3
        s_lshr_b32 s6, s46, 1
        s_and_b32 s47, s46, 1
        s_and_b32 s48, s44, 3
        s_lshl_b32 s48, s48, 1
        s_add_u32 s48, s48, s47
        s_lshl_b32 s47, s6, 3
        s_add_u32 s5, s48, s47
        s_lshl_b32 s40, s44, 2
        s_and_b32 s47, s45, 3
        s_add_u32 s40, s40, s47
        s_lshr_b32 s41, s45, 2
    """)
    if cfg.rot == 'i2j':
        p.I("s_lshl_b32 s7, s46, 1\n s_add_u32 s7, s7, s4\n s_and_b32 s7, s7, 7")
    elif cfg.rot == 'none':
        p.I("s_mov_b32 s7, 0")
    elif cfg.rot == 'i':
        p.I("s_and_b32 s7, s4, 7")
    elif cfg.rot == 'half':
        p.I("s_add_u32 s7, s46, s4\n s_and_b32 s7, s7, 3\n s_lshl_b32 s7, s7, 1")
    p.I("s_waitcnt lgkmcnt(0)")
    srd(p, 28, 84, WS_SIZE)
    p.I("""s_cmp_ge_u32 s3, 4
           s_cbranch_scc1 L_HELPER""")
    compute_waves(p, cfg, T)
    p.L('L_HELPER')
    helper_waves(p, cfg, T)
    p.L('L_END')
    p.I("s_endpgm")
    p.raw(f""".section .rodata,"a"
.p2align 6
.amdhsa_kernel {K}
  .amdhsa_next_free_vgpr 256
  .amdhsa_next_free_sgpr 102
  .amdhsa_accum_offset 256
  .amdhsa_group_segment_fixed_size 0
  .amdhsa_kernarg_size 88
  .amdhsa_user_sgpr_count 2
  .amdhsa_user_sgpr_kernarg_segment_ptr 1
  .amdhsa_system_sgpr_workgroup_id_x 1
.end_amdhsa_kernel""")
    return p

def dump_ts(p, cfg, T, n):
    if not cfg.ts: return
    p.I(f"""s_waitcnt lgkmcnt(0)
            s_lshl_b32 s44, s2, 3
            s_add_u32 s44, s44, s3
            s_lshl_b32 s44, s44, 6
            s_add_u32 s44, s44, {WS_TS}
            v_mov_b32 v6, 0""")
    for k in range(0, 8, 4):
        p.I(f"""v_mov_b32 v2, s{86+2*k}
                v_mov_b32 v3, s{88+2*k}
                v_mov_b32 v4, s{90+2*k}
                v_mov_b32 v5, s{92+2*k}
                s_mov_b64 exec, 1
                buffer_store_dwordx4 v[2:5], v6, s[28:31], s44 offen offset:{k*4}
                s_mov_b64 exec, -1""")

def epoch_tag(p):
    p.I("""s_load_dwordx2 s[42:43], s[84:85], 0
           s_waitcnt lgkmcnt(0)
           s_mul_i32 s44, s42, 0x9E3779B1
           s_mul_i32 s43, s43, 0x85EBCA6B
           s_add_u32 s43, s43, s42
           s_add_u32 s43, s43, 0xC2B2AE35
           s_add_u32 s42, s44, 0x7F4A7C15""")

VXA = [2, 3, 4, 5]; VWA = 6; VFL = 7; VFA = 8
XS = [10, 12]; XQ = [11, 13]; CS = [14, 15, 16]; VB1 = [17, 18]
def XF(b, rg): return 20 + 8*b + 4*rg
def WF(b, t): return 36 + 12*b + 4*t
def ACC(t, rg): return 160 + 32*t + 16*rg
def rng(a, n): return f"v[{a}:{a+n-1}]"

def compute_waves(p, cfg, T):
    p.I("""s_lshr_b32 s50, s3, 1
           s_and_b32 s51, s3, 1""")
    p.I(f"""s_cmp_lg_u32 s3, 0
            s_cbranch_scc1 L_C_NOINIT
            v_lshlrev_b32 v1, 2, v0
            v_add_u32 v1, {MISC}, v1
            v_cmp_eq_u32 vcc, 8, v0
            v_cndmask_b32 v2, 0, 1, vcc
            ds_write_b32 v1, v2
        L_C_NOINIT:""")
    epoch_tag(p)
    p.I("s_barrier")
    srd(p, 36, 74, 2752)
    p.I("""v_and_b32 v60, 31, v0
           v_lshrrev_b32 v61, 5, v0
           v_bfe_u32 v62, v0, 1, 3
           s_lshl_b32 s44, s50, 13
           v_lshlrev_b32 v63, 7, v60
           v_add_u32 v63, s44, v63""")
    for ks in range(4):
        p.I(f"""v_add_u32 v64, {2*ks}, v61
                v_xor_b32 v64, v64, v62
                v_lshlrev_b32 v64, 4, v64
                v_add_u32 v{VXA[ks]}, v63, v64""")
    p.I(f"""v_bfe_u32 v64, v0, 2, 2
            v_lshl_add_u32 v65, v61, 3, v64
            v_lshlrev_b32 v65, 7, v65
            v_lshrrev_b32 v66, 1, v64
            v_xor_b32 v66, s51, v66
            v_lshl_add_u32 v65, v66, 6, v65
            v_bfe_u32 v66, v0, 4, 1
            v_lshl_add_u32 v65, v66, 5, v65
            v_and_b32 v66, 3, v0
            v_lshl_add_u32 v65, v66, 3, v65
            v_add_u32 v{VWA}, 16384, v65
            v_mov_b32 v{VFA}, {MISC}
            v_mov_b32 v9, 1
            s_mov_b32 s52, 0x3f803f80""")
    for r in XS + XQ + CS: p.I(f"v_mov_b32 v{r}, 0")
    for r in range(160, 256): p.I(f"v_mov_b32 v{r}, 0")
    p.I(f"""v_and_b32 v60, 31, v0
            v_lshlrev_b32 v60, 1, v60
            s_cmp_eq_u32 s6, 0
            s_cbranch_scc0 L_C_B1B
            s_lshl_b32 s53, s5, 1
            s_add_u32 s54, s53, s51
            s_mov_b32 s53, 64
            s_branch L_C_B1D
        L_C_B1B:
            s_sub_u32 s53, s5, 8
            s_lshl_b32 s53, s53, 2
            s_add_u32 s53, s53, 16
            s_add_u32 s53, s53, s51
            s_add_u32 s54, s53, 2
        L_C_B1D:
            s_lshl_b32 s55, s53, 6
            s_lshl_b32 s56, s54, 6
            buffer_load_ushort v{VB1[0]}, v60, s[36:39], s55 offen
            buffer_load_ushort v{VB1[1]}, v60, s[36:39], s56 offen""")
    T.stamp(p, 1)
    p.I("""s_cmp_eq_u32 s6, 0
           s_cbranch_scc0 L_TYPEB""")
    main_loop(p, cfg, T, 'A')
    stats(p, cfg, 'A')
    T.stamp(p, 3)
    epilogue_A(p, cfg, T)
    p.L('L_TYPEB')
    main_loop(p, cfg, T, 'B')
    stats(p, cfg, 'B')
    T.stamp(p, 3)
    epilogue_B(p, cfg, T)

def frag_reads(ks, b):
    r = []
    for rg in range(2):
        r.append(f"ds_read_b128 {rng(XF(b, rg), 4)}, v{VXA[ks]} offset:{rg*4096}")
    for t in range(3):
        o = t*8192 + ks*2048
        r.append(f"ds_read_b64_tr_b16 {rng(WF(b, t), 2)}, v{VWA} offset:{o}")
        r.append(f"ds_read_b64_tr_b16 {rng(WF(b, t)+2, 2)}, v{VWA} offset:{o+512}")
    return r

def main_loop(p, cfg, T, ty):
    tr = {'A': [False, False, True], 'B': [True, True, True]}[ty]
    spin_lds_ge(p, f'L_{ty}_F0', f'v{VFA}', 0, 1)
    T.stamp(p, 2)
    for x in frag_reads(0, 0): p.I(x)
    p.I(f"""s_mov_b32 s57, 0
           s_mov_b32 s58, 0
           s_mov_b32 s48, {(-2*SLOT) & 0xffffffff}
           s_mov_b32 s49, {SLOT}""")
    p.L(f'L_{ty}_LOOP')
    for ks in range(4):
        b = ks & 1; nb = b ^ 1
        p.I("s_waitcnt lgkmcnt(0)")
        if ks == 3:
            p.I(f"""v_readfirstlane_b32 s44, v{VFL}
                    s_lshl_b32 s59, s57, 2
                    v_add_u32 v1, s59, v{VFA}
                    s_mov_b64 exec, 1
                    ds_add_u32 v1, v9 offset:64
                    s_mov_b64 exec, -1
                    s_cmp_ge_u32 s44, 1
                    s_cbranch_scc1 L_{ty}_FOK""")
            p.I(f"v_add_u32 v1, 4, v1")
            spin_lds_ge(p, f'L_{ty}_FS', 'v1', 0, 1, vt=f'v{VFL}')
            p.L(f'L_{ty}_FOK')
            p.I(f"""s_cmp_eq_u32 s58, 2
                    s_cselect_b32 s59, s48, s49
                    s_add_u32 s58, s58, 1
                    s_cmp_eq_u32 s58, 3
                    s_cselect_b32 s58, 0, s58""")
            for a in VXA + [VWA]: p.I(f"v_add_u32 v{a}, s59, v{a}")
        rd = frag_reads((ks + 1) & 3, nb)
        if ks == 2:
            rd.append(f"ds_read_b32 v{VFL}, v63 offset:4")
            p.I(f"""s_lshl_b32 s59, s57, 2
                    v_add_u32 v63, s59, v{VFA}""")
        order = [(t, rg) for t in range(3) for rg in range(2)]
        for m, (t, rg) in enumerate(order):
            a = ACC(t, rg)
            if tr[t]: p.I(f"v_mfma_f32_32x32x16_bf16 {rng(a,16)}, {rng(WF(b,t),4)}, {rng(XF(b,rg),4)}, {rng(a,16)}")
            else:     p.I(f"v_mfma_f32_32x32x16_bf16 {rng(a,16)}, {rng(XF(b,rg),4)}, {rng(WF(b,t),4)}, {rng(a,16)}")
            if m < 4:
                k0 = m * 2; k1 = k0 + 2
                for x in rd[k0:k1]: p.I(x)
                if m == 3:
                    for x in rd[8:]: p.I(x)
        par = ks & 1
        p.I(f"""s_cmp_eq_u32 s51, {par}
                s_cbranch_scc0 L_{ty}_NR{ks}""")
        for d in range(4):
            for rg in range(2):
                x = XF(b, rg) + d
                p.I(f"v_dot2_f32_bf16 v{XS[rg]}, v{x}, s52, v{XS[rg]}")
                p.I(f"v_dot2_f32_bf16 v{XQ[rg]}, v{x}, v{x}, v{XQ[rg]}")
        p.L(f'L_{ty}_NR{ks}')
        p.I(f"""s_cmp_eq_u32 s50, {par}
                s_cbranch_scc0 L_{ty}_NC{ks}""")
        for d in range(4):
            for t in range(3):
                w = WF(b, t) + d
                p.I(f"v_dot2_f32_bf16 v{CS[t]}, v{w}, s52, v{CS[t]}")
        p.L(f'L_{ty}_NC{ks}')
    p.I(f"""s_add_u32 s57, s57, 1
            s_cmp_lt_u32 s57, 8
            s_cbranch_scc1 L_{ty}_LOOP
            s_waitcnt lgkmcnt(0)""")

def half_sum(p, r, t):
    p.I(f"""v_mov_b32 v{t}, v{r}
            v_permlane32_swap_b32 v{r}, v{t}
            v_add_f32 v{r}, v{r}, v{t}""")

MEAN = [60, 61]; STD = [62, 64]; RSTD = [66, 68]
ROWF = [72, 76]
COLF = [80, 84, 88]

def stats(p, cfg, ty):
    for r in XS + XQ + CS: half_sum(p, r, 1)
    p.I(f"""v_and_b32 v20, 31, v0
            s_lshl_b32 s44, s51, 10
            s_lshl_b32 s45, s50, 9
            s_add_u32 s44, s44, s45
            s_add_u32 s44, s44, {L_RS}
            v_lshl_add_u32 v21, v20, 3, s44
            s_lshl_b32 s46, s50, 1
            s_add_u32 s46, s46, s51
            s_mul_i32 s46, s46, 384
            s_add_u32 s46, s46, {L_CS}
            v_lshl_add_u32 v22, v20, 2, s46
            ds_write_b64 v21, v[{XS[0]}:{XQ[0]}]
            ds_write_b64 v21, v[{XS[1]}:{XQ[1]}] offset:256
            ds_write_b32 v22, v{CS[0]}
            ds_write_b32 v22, v{CS[1]} offset:128
            ds_write_b32 v22, v{CS[2]} offset:256
            s_waitcnt lgkmcnt(0)
            s_mov_b64 exec, 1
            ds_add_u32 v{VFA}, v9 offset:{L_SCNT - MISC}
            s_mov_b64 exec, -1""")
    spin_lds_ge(p, f'L_{ty}_ST', f'v{VFA}', L_SCNT - MISC, 4)
    p.I(f"""s_xor_b32 s45, s51, 1
            s_lshl_b32 s45, s45, 10
            s_lshl_b32 s47, s50, 9
            s_add_u32 s45, s45, s47
            s_add_u32 s45, s45, {L_RS}
            v_lshl_add_u32 v21, v20, 3, s45
            s_xor_b32 s47, s50, 1
            s_lshl_b32 s47, s47, 1
            s_add_u32 s47, s47, s51
            s_mul_i32 s47, s47, 384
            s_add_u32 s47, s47, {L_CS}
            v_lshl_add_u32 v22, v20, 2, s47
            ds_read_b64 v[24:25], v21
            ds_read_b64 v[26:27], v21 offset:256
            ds_read_b32 v28, v22
            ds_read_b32 v29, v22 offset:128
            ds_read_b32 v30, v22 offset:256
            s_waitcnt lgkmcnt(0)
            v_add_f32 v{XS[0]}, v{XS[0]}, v24
            v_add_f32 v{XQ[0]}, v{XQ[0]}, v25
            v_add_f32 v{XS[1]}, v{XS[1]}, v26
            v_add_f32 v{XQ[1]}, v{XQ[1]}, v27
            v_add_f32 v{CS[0]}, v{CS[0]}, v28
            v_add_f32 v{CS[1]}, v{CS[1]}, v29
            v_add_f32 v{CS[2]}, v{CS[2]}, v30
            s_mov_b32 s44, 0x3b000000
            s_mov_b32 s45, 0x3727c5ac
            s_mov_b32 s46, 0xffff0000
            v_cmp_gt_u32 vcc, 32, v0""")
    for rg in range(2):
        m, sd, rs = MEAN[rg], STD[rg], RSTD[rg]
        f = ROWF[rg]
        p.I(f"""v_mul_f32 v{m}, s44, v{XS[rg]}
                v_mul_f32 v24, s44, v{XQ[rg]}
                v_fma_f32 v24, -v{m}, v{m}, v24
                v_max_f32 v24, 0, v24
                v_add_f32 v24, s45, v24
                v_sqrt_f32 v{sd}, v24
                v_rsq_f32 v{rs}, v24
                v_sub_f32 v25, 0, v{m}
                v_cvt_pk_bf16_f32 v{f}, v25, v25
                v_and_b32 v26, s46, v{f}
                v_sub_f32 v26, v25, v26
                v_cvt_pk_bf16_f32 v{f+1}, v26, v{sd}
                v_and_b32 v27, s46, v{f+1}
                v_sub_f32 v27, v{sd}, v27
                v_mov_b32 v28, 0
                v_cvt_pk_bf16_f32 v{f+2}, v27, v28
                v_cndmask_b32 v{f}, 0, v{f}, vcc
                v_cndmask_b32 v{f+1}, 0, v{f+1}, vcc
                v_cndmask_b32 v{f+2}, 0, v{f+2}, vcc
                v_mov_b32 v{f+3}, 0""")
    p.I("s_waitcnt vmcnt(0)")
    for t in range(3):
        f = COLF[t]; c = CS[t]
        b1 = None
        if ty == 'A' and t == 2: b1 = VB1[1]
        if ty == 'B' and t >= 1: b1 = VB1[t-1]
        p.I(f"""v_cvt_pk_bf16_f32 v24, v{c}, v{c}
                v_and_b32 v25, s46, v24
                v_sub_f32 v26, v{c}, v25
                v_cvt_pk_bf16_f32 v{f}, v25, v26""")
        if b1 is None:
            p.I(f"""v_lshrrev_b32 v{f+1}, 16, v25
                    v_mov_b32 v{f+2}, 0""")
        else:
            p.I(f"""v_lshrrev_b32 v27, 16, v25
                    v_lshl_or_b32 v{f+1}, v{b1}, 16, v27
                    v_mov_b32 v{f+2}, v{b1}""")
        p.I(f"v_mov_b32 v{f+3}, 0")
    if cfg.dbgstats:
        p.I(f"""s_lshl_b32 s44, s2, 2
                s_add_u32 s44, s44, s3
                s_lshl_b32 s44, s44, 11
                s_add_u32 s44, s44, {WS_DBG}
                v_lshlrev_b32 v24, 2, v0""")
        for k, r in enumerate([MEAN[0], MEAN[1], RSTD[0], RSTD[1], CS[0], CS[1], CS[2], VB1[1]]):
            p.I(f"buffer_store_dword v{r}, v24, s[28:31], s44 offen offset:{k*256}")
        p.I("s_waitcnt vmcnt(0)")
    tr = {'A': [False, False, True], 'B': [True, True, True]}[ty]
    for t in range(3):
        for rg in range(2):
            a = ACC(t, rg)
            if tr[t]: p.I(f"v_mfma_f32_32x32x16_bf16 {rng(a,16)}, {rng(COLF[t],4)}, {rng(ROWF[rg],4)}, {rng(a,16)}")
            else:     p.I(f"v_mfma_f32_32x32x16_bf16 {rng(a,16)}, {rng(ROWF[rg],4)}, {rng(COLF[t],4)}, {rng(a,16)}")

K1 = -2.0 * 1.4426950408889634 * 0.7978845608028654
K2 = K1 * 0.044715
import struct
def fhex(x): return '0x%08x' % struct.unpack('<I', struct.pack('<f', x))[0]

def gelu_tile(p, acc, rg, out, tmp):
    A1, A2, SD = GA1[rg], GA2[rg], STD[rg]
    for h in range(2):
        prs = [acc + 8*h + 2*k for k in range(4)]
        q = [tmp + 2*k for k in range(4)]; e = [tmp + 8 + 2*k for k in range(4)]
        for k in range(4): p.I(f"v_pk_mul_f32 v[{q[k]}:{q[k]+1}], v[{prs[k]}:{prs[k]+1}], v[{prs[k]}:{prs[k]+1}]")
        for k in range(4): p.I(f"v_pk_fma_f32 v[{q[k]}:{q[k]+1}], v[{q[k]}:{q[k]+1}], v[{A2}:{A2+1}], v[{A1}:{A1+1}] op_sel_hi:[1,0,0]")
        for k in range(4): p.I(f"v_pk_mul_f32 v[{q[k]}:{q[k]+1}], v[{q[k]}:{q[k]+1}], v[{prs[k]}:{prs[k]+1}]")
        for k in range(4):
            p.I(f"v_exp_f32 v{e[k]}, v{q[k]}")
            p.I(f"v_exp_f32 v{e[k]+1}, v{q[k]+1}")
        for k in range(4): p.I(f"v_pk_fma_f32 v[{e[k]}:{e[k]+1}], v[{e[k]}:{e[k]+1}], v[{SD}:{SD+1}], v[{SD}:{SD+1}] op_sel_hi:[1,0,0]")
        for k in range(4):
            p.I(f"v_rcp_f32 v{e[k]}, v{e[k]}")
            p.I(f"v_rcp_f32 v{e[k]+1}, v{e[k]+1}")
        for k in range(4): p.I(f"v_pk_mul_f32 v[{e[k]}:{e[k]+1}], v[{e[k]}:{e[k]+1}], v[{prs[k]}:{prs[k]+1}]")
        for k in range(4): p.I(f"v_cvt_pk_bf16_f32 v{out+4*h+k}, v{e[k]}, v{e[k]+1}")

GA1 = [92, 94]; GA2 = [96, 98]; QA = [100, 102]
LOG2E = 1.4426950408889634

def lane_consts(p):
    p.I(f"""s_mov_b32 s44, {fhex(K1)}
            s_mov_b32 s45, {fhex(K2)}
            s_mov_b32 s46, {fhex(LOG2E)}""")
    for rg in range(2):
        rs = RSTD[rg]
        p.I(f"""v_mul_f32 v{GA1[rg]}, s44, v{rs}
                v_mul_f32 v24, v{rs}, v{rs}
                v_mul_f32 v24, v24, v{rs}
                v_mul_f32 v{GA2[rg]}, s45, v24
                v_mul_f32 v{QA[rg]}, s46, v{rs}""")

def phi_tile_T(p, acc, rg, out, tmp):
    rs, qa = RSTD[rg], QA[rg]
    for h in range(2):
        prs = [acc + 8*h + 2*k for k in range(4)]
        t = [tmp + 2*k for k in range(4)]; y = [tmp + 8 + 2*k for k in range(4)]
        for k in range(4): p.I(f"v_pk_mul_f32 v[{t[k]}:{t[k]+1}], v[{prs[k]}:{prs[k]+1}], v[{qa}:{qa+1}] op_sel_hi:[1,0]")
        for k in range(4): p.I(f"v_pk_fma_f32 v[{y[k]}:{y[k]+1}], v[{prs[k]}:{prs[k]+1}], v[{rs}:{rs+1}], v[104:105] op_sel_hi:[1,0,0]")
        for k in range(4):
            p.I(f"v_exp_f32_e64 v{t[k]}, v{t[k]} clamp")
            p.I(f"v_exp_f32_e64 v{t[k]+1}, v{t[k]+1} clamp")
        for k in range(4):
            p.I(f"v_max_f32 v{y[k]}, v{y[k]}, v104")
            p.I(f"v_max_f32 v{y[k]+1}, v{y[k]+1}, v104")
        for k in range(4): p.I(f"v_pk_add_f32 v[{t[k]}:{t[k]+1}], v[{t[k]}:{t[k]+1}], v[{y[k]}:{y[k]+1}]")
        for k in range(4): p.I(f"v_cvt_pk_bf16_f32 v{out+4*h+k}, v{t[k]}, v{t[k]+1}")

def store_frags(p, out, sbase, rg, nstores):
    for u in range(2):
        p.I(f"buffer_store_dwordx4 {rng(out+4*u,4)}, v105, s[28:31], {sbase} offen offset:{u*2048 + rg*1024} sc1")
    return nstores + 2

def h_base(p, sreg, tile_sreg):
    p.I(f"""s_mul_i32 {sreg}, s60, {HF_IB}
            s_lshl_b32 s44, {tile_sreg}, 12
            s_add_u32 {sreg}, {sreg}, s44
            s_add_u32 {sreg}, {sreg}, {WS_HF}""")

def f1_flag(p, name):
    p.I(f"""s_lshl_b32 s44, s60, 5
            s_lshl_b32 s45, s5, 1
            s_add_u32 s44, s44, s45
            s_add_u32 s44, s44, s51
            s_mul_i32 s44, s44, {FS}
            s_add_u32 s44, s44, {WS_F1}""")
    write_flag(p, 's44')

def epi_common(p):
    lane_consts(p)
    p.I(f"""v_mov_b32 v104, {fhex(1e-6)}
            v_lshlrev_b32 v105, 4, v0
            s_lshl_b32 s60, s4, 1
            s_add_u32 s60, s60, s50""")

def epilogue_B(p, cfg, T):
    epi_common(p)
    OUT = [[108, 116], [124, 132]]
    p.I(f"""s_sub_u32 s61, s5, 8
            s_lshl_b32 s61, s61, 2
            s_lshl_b32 s44, s51, 1
            s_add_u32 s61, s61, s44
            s_lshl_b32 s61, s61, 11
            s_mul_i32 s44, s60, {PQ_IB}
            s_add_u32 s61, s61, s44
            s_add_u32 s61, s61, {WS_PQ}""")
    for rg in range(2):
        phi_tile_T(p, ACC(0, rg), rg, OUT[0][rg], 140)
        store_frags(p, OUT[0][rg], 's61', rg, 0)
    for t in (1, 2):
        tile = 's53' if t == 1 else 's54'
        p.I(f"""s_cmp_lt_u32 {tile}, 43
                s_cbranch_scc0 L_B_SKIP{t}""")
        h_base(p, 's61', tile)
        for rg in range(2):
            o = OUT[t & 1][rg]
            gelu_tile(p, ACC(t, rg), rg, o, 140)
            store_frags(p, o, 's61', rg, 0)
        p.L(f'L_B_SKIP{t}')
    T.stamp(p, 4)
    p.I("s_waitcnt vmcnt(0)")
    T.stamp(p, 5)
    f1_flag(p, 'B')
    T.stamp(p, 6)
    dump_ts(p, cfg, T, 7)
    p.I("s_endpgm")

def epilogue_A(p, cfg, T):
    epi_common(p)
    p.I(f"""s_lshl_b32 s44, s3, 8
            s_add_u32 s44, s44, {L_RSTD}
            v_and_b32 v20, 31, v0
            v_lshl_add_u32 v21, v20, 2, s44
            ds_write_b32 v21, v{RSTD[0]}
            ds_write_b32 v21, v{RSTD[1]} offset:128
            v_lshrrev_b32 v22, 5, v0
            v_lshl_add_u32 v22, v22, 4, s44
            s_waitcnt lgkmcnt(0)""")
    RB = [108, 124]
    for rg in range(2):
        for g in range(4):
            p.I(f"ds_read_b128 {rng(RB[rg]+4*g,4)}, v22 offset:{rg*128 + g*32}")
    p.I(f"""s_mov_b32 s44, {fhex(LOG2E)}
            v_mov_b32 v106, s44
            s_waitcnt lgkmcnt(0)""")
    KP = [20, 28]; VP = [36, 44]
    tmp = 140
    for rg in range(2):
        a = ACC(0, rg); rb = RB[rg]
        for h in range(2):
            prs = [a + 8*h + 2*k for k in range(4)]; rr = [rb + 8*h + 2*k for k in range(4)]
            y = [tmp + 2*k for k in range(4)]; t = [tmp + 8 + 2*k for k in range(4)]
            for k in range(4): p.I(f"v_pk_mul_f32 v[{y[k]}:{y[k]+1}], v[{prs[k]}:{prs[k]+1}], v[{rr[k]}:{rr[k]+1}]")
            for k in range(4): p.I(f"v_pk_mul_f32 v[{t[k]}:{t[k]+1}], v[{y[k]}:{y[k]+1}], v[106:107] op_sel_hi:[1,0]")
            for k in range(4):
                p.I(f"v_exp_f32_e64 v{t[k]}, v{t[k]} clamp")
                p.I(f"v_exp_f32_e64 v{t[k]+1}, v{t[k]+1} clamp")
            for k in range(4): p.I(f"v_pk_add_f32 v[{y[k]}:{y[k]+1}], v[{y[k]}:{y[k]+1}], v[104:105] op_sel_hi:[1,0]")
            for k in range(4):
                p.I(f"v_max_f32 v{y[k]}, v{y[k]}, v104")
                p.I(f"v_max_f32 v{y[k]+1}, v{y[k]+1}, v104")
            for k in range(4): p.I(f"v_pk_add_f32 v[{t[k]}:{t[k]+1}], v[{t[k]}:{t[k]+1}], v[{y[k]}:{y[k]+1}]")
            for k in range(4): p.I(f"v_cvt_pk_bf16_f32 v{KP[rg]+4*h+k}, v{t[k]}, v{t[k]+1}")
        a = ACC(1, rg)
        for k in range(8):
            p.I(f"v_pk_mul_f32 v[{tmp+2*(k%4)}:{tmp+2*(k%4)+1}], v[{a+2*k}:{a+2*k+1}], v[{rb+2*k}:{rb+2*k+1}]")
            p.I(f"v_cvt_pk_bf16_f32 v{VP[rg]+k}, v{tmp+2*(k%4)}, v{tmp+2*(k%4)+1}")
    for r in range(52, 56): p.I(f"v_mov_b32 v{r}, s52")
    KV = ACC(0, 0); ZZ = ACC(0, 1)
    first = True
    for rg in range(2):
        for t in range(2):
            c1 = '0' if first else rng(KV, 16); c2 = '0' if first else rng(ZZ, 16)
            p.I(f"v_mfma_f32_32x32x16_bf16 {rng(KV,16)}, {rng(KP[rg]+4*t,4)}, {rng(VP[rg]+4*t,4)}, {c1}")
            p.I(f"v_mfma_f32_32x32x16_bf16 {rng(ZZ,16)}, {rng(KP[rg]+4*t,4)}, v[52:55], {c2}")
            first = False
    h_base(p, 's61', 's54')
    OUT = [108, 116]
    gelu_tile(p, ACC(2, 0), 0, OUT[0], 140)
    p.I("""v_and_b32 v56, 16, v0
           v_cmp_ne_u32 vcc, 0, v56""")
    SEL = 124
    for g in range(2):
        for i in range(4):
            p.I(f"v_cndmask_b32 v{SEL+4*g+i}, v{KV+4*g+i}, v{KV+8+4*g+i}, vcc")
            p.I(f"v_cndmask_b32 v{SEL+8+4*g+i}, v{ZZ+4*g+i}, v{ZZ+8+4*g+i}, vcc")
    p.I(f"""s_lshl_b32 s62, s5, 2
            s_lshl_b32 s44, s51, 1
            s_add_u32 s62, s62, s44
            s_lshl_b32 s44, s62, 15
            s_lshl_b32 s45, s60, 10
            s_add_u32 s44, s44, s45
            s_add_u32 s44, s44, {WS_KVP}
            v_bfe_u32 v56, v0, 4, 1
            v_lshlrev_b32 v57, 15, v56
            v_lshrrev_b32 v58, 5, v0
            v_lshl_add_u32 v57, v58, 8, v57
            v_and_b32 v59, 15, v0
            v_lshl_add_u32 v57, v59, 4, v57
            buffer_store_dwordx4 {rng(SEL,4)}, v57, s[28:31], s44 offen sc1
            buffer_store_dwordx4 {rng(SEL+4,4)}, v57, s[28:31], s44 offen offset:512 sc1
            s_lshl_b32 s45, s62, 11
            s_lshl_b32 s46, s60, 4
            s_add_u32 s45, s45, s46
            s_add_u32 s45, s45, {WS_ZP}
            v_lshlrev_b32 v57, 11, v56
            v_lshl_add_u32 v57, v58, 9, v57
            s_mov_b32 exec_lo, 0x00010001
            s_mov_b32 exec_hi, 0x00010001
            buffer_store_dwordx4 {rng(SEL+8,4)}, v57, s[28:31], s45 offen sc1
            buffer_store_dwordx4 {rng(SEL+12,4)}, v57, s[28:31], s45 offen offset:1024 sc1
            s_mov_b64 exec, -1""")
    store_frags(p, OUT[0], 's61', 0, 0)
    gelu_tile(p, ACC(2, 1), 1, OUT[1], 140)
    store_frags(p, OUT[1], 's61', 1, 0)
    T.stamp(p, 4)
    p.I(f"""s_waitcnt vmcnt(4)
            s_lshl_b32 s44, s5, 1
            s_add_u32 s44, s44, s51
            s_lshl_b32 s44, s44, 5
            s_add_u32 s44, s44, s60
            s_mul_i32 s44, s44, {FS}
            s_add_u32 s44, s44, {WS_FK}""")
    write_flag(p, 's44')
    p.I("s_waitcnt vmcnt(1)")
    T.stamp(p, 5)
    f1_flag(p, 'A')
    p.I("""s_cmp_eq_u32 s3, 0
           s_cbranch_scc1 L_REDUCE
           s_cmp_eq_u32 s3, 1
           s_cbranch_scc0 L_A_DONE
           s_cmp_eq_u32 s2, 0
           s_cbranch_scc0 L_A_DONE""")
    for k in range(16):
        p.I(f"""v_add_u32 v20, {k*64}, v0
                s_mov_b32 s44, {FS}
                v_mul_lo_u32 v20, v20, s44
                v_add_u32 v20, {WS_F1}, v20""")
        poll_flags(p, f'L_EP{k}', 'v20', 22, 64, sleep=4)
    p.I("""s_mov_b32 s44, 0""")
    write_flag(p, 's44')
    p.I("s_branch L_A_DONE")
    p.L('L_REDUCE')
    p.I(f"""s_and_b32 s61, s4, 3
            s_lshr_b32 s63, s4, 2
            s_lshl_b32 s62, s5, 2
            s_add_u32 s62, s62, s61
            s_lshr_b32 s44, s61, 1
            s_lshl_b32 s45, s5, 1
            s_add_u32 s44, s44, s45
            s_lshl_b32 s44, s44, 5
            v_and_b32 v20, 31, v0
            v_add_u32 v20, s44, v20
            s_mov_b32 s44, {FS}
            v_mul_lo_u32 v20, v20, s44
            v_add_u32 v20, {WS_FK}, v20""")
    poll_flags(p, 'L_RK', 'v20', 22, 64)
    p.I(f"""v_lshrrev_b32 v20, 4, v0
            v_and_b32 v21, 15, v0
            v_lshlrev_b32 v22, 10, v20
            v_lshl_add_u32 v22, v21, 4, v22
            v_lshlrev_b32 v23, 4, v20
            s_lshl_b32 s44, s62, 15
            s_lshl_b32 s45, s63, 8
            s_add_u32 s44, s44, s45
            s_add_u32 s44, s44, {WS_KVP}
            s_lshl_b32 s45, s62, 11
            s_lshl_b32 s46, s63, 9
            s_add_u32 s45, s45, s46
            s_add_u32 s45, s45, {WS_ZP}""")
    for u in range(8):
        p.I(f"""buffer_load_dwordx4 {rng(64+4*u,4)}, v22, s[28:31], s44 offen sc1
                s_add_u32 s44, s44, 4096""")
    for u in range(8):
        p.I(f"buffer_load_dwordx4 {rng(96+4*u,4)}, v23, s[28:31], s45 offen offset:{u*64} sc1")
    p.I("s_waitcnt vmcnt(0)")
    for base in (64, 96):
        for u in range(1, 8):
            for c in range(4): p.I(f"v_add_f32 v{base+c}, v{base+c}, v{base+4*u+c}")
    for r in (64, 65, 66, 67, 96, 97, 98, 99):
        half_sum(p, r, 1)
        p.I(f"""v_mov_b32 v1, v{r}
                v_permlane16_swap_b32 v{r}, v1
                v_add_f32 v{r}, v{r}, v1""")
    p.I(f"""v_cmp_gt_u32 vcc, 16, v0
            v_cndmask_b32 v64, v96, v64, vcc
            v_cndmask_b32 v65, v97, v65, vcc
            v_cndmask_b32 v66, v98, v66, vcc
            v_cndmask_b32 v67, v99, v67, vcc
            v_cvt_pk_bf16_f32 v68, v64, v65
            v_cvt_pk_bf16_f32 v69, v66, v67
            v_subrev_u32 v24, 16, v0
            v_lshlrev_b32 v24, 2, v24
            v_add_u32 v24, 16, v24
            v_cndmask_b32 v24, v24, v0, vcc
            v_lshlrev_b32 v24, 4, v24
            s_lshl_b32 s44, s62, 10
            s_and_b32 s45, s63, 1
            s_lshl_b32 s45, s45, 9
            s_add_u32 s44, s44, s45
            s_lshr_b32 s45, s63, 1
            s_lshl_b32 s45, s45, 3
            s_add_u32 s44, s44, s45
            s_add_u32 s44, s44, {WS_KVF}
            s_mov_b64 exec, 0x3ffff
            buffer_store_dwordx2 v[68:69], v24, s[28:31], s44 offen sc1
            s_mov_b64 exec, -1
            s_waitcnt vmcnt(0)
            s_lshl_b32 s44, s62, 2
            s_add_u32 s44, s44, s63
            s_mul_i32 s44, s44, {FS}
            s_add_u32 s44, s44, {WS_FR}""")
    write_flag(p, 's44')
    p.L('L_A_DONE')
    T.stamp(p, 6)
    dump_ts(p, cfg, T, 7)
    p.I("s_endpgm")

def helper_waves(p, cfg, T):
    p.I("s_sub_u32 s49, s3, 4")
    p.I("""s_cmp_eq_u32 s49, 0
           s_cbranch_scc0 L_H_NOTLOADER""")
    loader(p, cfg, T)
    p.I("s_branch L_H_B")
    p.L('L_H_NOTLOADER')
    p.I("s_barrier")
    p.I(f"v_mov_b32 v12, {MISC}")
    spin_lds_ge(p, 'L_H_ISS', 'v12', L_ISS - MISC, 1)
    p.L('L_H_B')
    phase2(p, cfg, T)

def loader(p, cfg, T):
    srd(p, 8, 64, 2048*512*2)
    srd(p, 12, 66, 512*1536*2)
    srd(p, 16, 72, 512*1376*2)
    p.I("""s_cmp_eq_u32 s6, 0
           s_cselect_b32 s20, s12, s16
           s_cselect_b32 s21, s13, s17
           s_cselect_b32 s22, s14, s18
           s_mov_b32 s23, 0x20000""")
    p.I(f"""v_lshrrev_b32 v10, 3, v0
            v_and_b32 v11, 7, v0
            v_lshrrev_b32 v13, 4, v0
            v_xor_b32 v14, v11, v13
            v_lshlrev_b32 v14, 4, v14
            v_lshl_add_u32 v2, v10, 10, v14
            v_xor_b32 v3, 64, v2
            v_bfe_u32 v13, v0, 4, 1
            v_lshlrev_b32 v13, 2, v13
            v_xor_b32 v14, v11, v13
            v_lshlrev_b32 v14, 4, v14
            v_mul_u32_u24 v4, 3072, v10
            v_add_u32 v4, v4, v14
            v_mul_u32_u24 v5, 2752, v10
            v_add_u32 v5, v5, v14
            s_cmp_eq_u32 s6, 0
            s_cselect_b64 vcc, -1, 0
            v_cndmask_b32 v6, v5, v4, vcc
            v_mov_b32 v12, {MISC}
            v_mov_b32 v9, 1""")
    p.I(f"""s_cmp_eq_u32 s6, 0
            s_cbranch_scc0 L_L_TB
            s_lshl_b32 s44, s5, 7
            s_add_u32 s52, s44, 1024
            s_add_u32 s53, s44, 2048
            s_mov_b32 s54, s44
            s_mov_b32 s55, {8*3072}
            s_mov_b32 s56, {64*3072}
            s_branch L_L_TD
        L_L_TB:
            s_sub_u32 s44, s5, 8
            s_lshl_b32 s52, s44, 7
            s_lshl_b32 s44, s44, 8
            s_add_u32 s53, s44, 1024
            s_add_u32 s54, s44, 1152
            s_mov_b32 s55, {8*2752}
            s_mov_b32 s56, {64*2752}
        L_L_TD:
            s_lshl_b32 s57, s4, 17
            s_mov_b32 s58, 0
            s_mov_b32 s59, 0""")
    p.L('L_L_LOOP')
    p.I(f"""s_add_u32 s60, s58, s7
            s_and_b32 s60, s60, 7
            s_cmp_lt_u32 s58, 3
            s_cbranch_scc1 L_L_GO""")
    p.I(f"""s_lshl_b32 s44, s58, 2
            s_add_u32 s44, s44, {L_FREE - 12}
            v_mov_b32 v13, s44
            ds_read_b32 v1, v13
            s_waitcnt lgkmcnt(0)
            v_readfirstlane_b32 s44, v1
            s_cmp_ge_u32 s44, 4
            s_cbranch_scc1 L_L_GO
            s_waitcnt vmcnt(0)
            s_lshl_b32 s44, s58, 2
            s_add_u32 s44, s44, {L_FULL - 4}
            v_mov_b32 v14, s44
            ds_write_b32 v14, v9""")
    spin_lds_ge(p, 'L_L_FR', 'v13', 0, 4)
    p.L('L_L_GO')
    p.I(f"""s_lshl_b32 s61, s60, 7
            s_add_u32 s61, s61, s57
            s_mul_i32 s62, s60, {64*3072}
            s_add_u32 s62, s62, s52
            s_mul_i32 s63, s60, s56
            s_add_u32 s63, s63, s53
            s_mul_i32 s48, s60, {64*2752}
            s_add_u32 s48, s48, s54""")
    pieces = []
    for pc in range(16):
        pieces.append((f"s_add_u32 m0, s59, {pc*1024}", f"buffer_load_dwordx4 v{2 + (pc & 1)}, s[8:11], s61 offen lds", "s_add_u32 s61, s61, 8192"))
    for g in range(8):
        pieces.append((f"s_add_u32 m0, s59, {16384 + g*1024}", "buffer_load_dwordx4 v4, s[12:15], s62 offen lds", f"s_add_u32 s62, s62, {8*3072}"))
        pieces.append((f"s_add_u32 m0, s59, {16384 + 8192 + g*1024}", "buffer_load_dwordx4 v6, s[20:23], s63 offen lds", "s_add_u32 s63, s63, s55"))
        pieces.append((f"s_add_u32 m0, s59, {16384 + 16384 + g*1024}", "buffer_load_dwordx4 v5, s[16:19], s48 offen lds", f"s_add_u32 s48, s48, {8*2752}"))
    for n, (a, b_, c_) in enumerate(pieces):
        if n == cfg.fullpt:
            p.I(f"""s_cmp_eq_u32 s58, 0
                    s_cbranch_scc1 L_L_NF
                    s_waitcnt vmcnt({0 if cfg.fullwait0 else cfg.fullpt})
                    s_lshl_b32 s44, s58, 2
                    s_add_u32 s44, s44, {L_FULL - 4}
                    v_mov_b32 v14, s44
                    ds_write_b32 v14, v9
                L_L_NF:""")
        p.I(a); p.I(b_); p.I(c_)
    p.I(f"""s_cmp_lg_u32 s58, 0
            s_cbranch_scc1 L_L_NB
            s_barrier
        L_L_NB:
            s_add_u32 s59, s59, {SLOT}
            s_cmp_eq_u32 s59, {3*SLOT}
            s_cselect_b32 s59, 0, s59
            s_add_u32 s58, s58, 1
            s_cmp_lt_u32 s58, 8
            s_cbranch_scc1 L_L_LOOP
            ds_write_b32 v12, v9 offset:{L_ISS - MISC}""")
    T.stamp(p, 1)

AR = 16
RB = 64
def ACC2(cg, rg): return 192 + 32*cg + 16*rg
NH = 22
NR = 16

def phase2(p, cfg, T):
    srd(p, 20, 76, 1376*512*2)
    srd(p, 24, 68, 512*512*2)
    srd(p, 8, 64, 2048*512*2)
    srd(p, 32, 80, 2048*512*2)
    srd(p, 36, 78, 1024)
    p.I(f"""v_lshrrev_b32 v10, 3, v0
            v_and_b32 v11, 7, v0
            v_bfe_u32 v13, v0, 4, 1
            v_lshlrev_b32 v13, 2, v13
            v_xor_b32 v14, v11, v13
            v_lshlrev_b32 v14, 4, v14
            v_lshl_add_u32 v3, v10, 10, v14
            v_lshlrev_b32 v2, 4, v0
            v_mov_b32 v12, {MISC}
            v_mov_b32 v9, 1""")
    p.I(f"""v_lshrrev_b32 v10, 5, v0
            v_bfe_u32 v11, v0, 2, 2
            v_lshl_add_u32 v13, v10, 2, v11
            v_lshlrev_b32 v13, 7, v13
            v_lshrrev_b32 v14, 1, v11
            v_lshl_add_u32 v13, v14, 6, v13
            v_bfe_u32 v14, v0, 4, 1
            v_lshl_add_u32 v13, v14, 5, v13
            v_and_b32 v14, 3, v0
            v_lshl_add_u32 v13, v14, 3, v13""")
    p.I(f"""s_lshl_b32 s44, s49, 13
            s_add_u32 s52, s44, {MSEG}
            s_mul_i32 s44, s49, 10240
            s_add_u32 s53, s44, {2*SLOT}
            s_mov_b32 s54, s44
            s_add_u32 s55, s44, {SLOT}""")
    for k in range(4):
        p.I(f"""v_add_u32 v{4+2*k}, s{52+k}, v13
                v_xor_b32 v{5+2*k}, 64, v{4+2*k}""")
    cells = [(0, n) for n in range(4)] + [(1, n) for n in range(5)] + [(2, n) for n in range(5)] + [(3, n) for n in range(5)]
    Rcell = cells[:16]
    Lcell = cells[16:19] + cells[0:4] + cells[4:9] + cells[9:11]
    p.I(f"""s_mul_i32 s56, s49, {22*16*1024}
            s_lshl_b32 s44, s41, 7
            s_add_u32 s56, s56, s44
            s_lshl_b32 s57, s49, 17
            s_add_u32 s57, s57, s44""")
    def issue(kidx, cell):
        reg, n = cell
        if kidx < NH: S, sb, off = 's[20:23]', 's56', kidx*16384
        else: S, sb, off = 's[24:27]', 's57', (kidx - NH)*16384
        for h in range(2):
            p.I(f"""s_add_u32 m0, s{52+reg}, {n*2048 + h*1024}
                    s_add_u32 s44, {sb}, {off + h*8192}
                    buffer_load_dwordx4 v3, {S}, s44 offen lds""")
    def readB(cell, dst):
        reg, n = cell
        out = []
        for cg in range(2):
            a = 4 + 2*reg + cg
            out.append(f"ds_read_b64_tr_b16 {rng(dst+4*cg,2)}, v{a} offset:{n*2048}")
            out.append(f"ds_read_b64_tr_b16 {rng(dst+4*cg+2,2)}, v{a} offset:{n*2048+1024}")
        return out
    for k in range(4): issue(k, Rcell[k])
    p.I(f"""s_cmp_eq_u32 s49, 0
            s_cbranch_scc0 L_P2_NF7
            s_waitcnt vmcnt(8)
            ds_write_b32 v12, v9 offset:{L_FULL - MISC + 28}
        L_P2_NF7:""")
    epoch_tag(p)
    spin_lds_ge(p, 'L_P2_W5', 'v12', L_FREE - MISC + 20, 4)
    for k in range(4, 9): issue(k, Rcell[k])
    spin_lds_ge(p, 'L_P2_W6', 'v12', L_FREE - MISC + 24, 4)
    for k in range(9, 14): issue(k, Rcell[k])
    spin_lds_ge(p, 'L_P2_W7', 'v12', L_FREE - MISC + 28, 4)
    for k in range(14, 16): issue(k, Rcell[k])
    for n in range(3): issue(16 + n, Lcell[n])
    T.stamp(p, 2)
    p.I("s_waitcnt vmcnt(30)")
    for k in range(4):
        for x in readB(Rcell[k], RB + 8*k): p.I(x)
    p.I("s_waitcnt lgkmcnt(0)")
    for n in range(3, 7): issue(16 + n, Lcell[n])
    p.I("s_waitcnt vmcnt(28)")
    for k in range(4, 9):
        for x in readB(Rcell[k], RB + 8*k): p.I(x)
    p.I("s_waitcnt lgkmcnt(0)")
    for n in range(7, 12): issue(16 + n, Lcell[n])
    p.I("s_waitcnt vmcnt(28)")
    for k in range(9, 14):
        for x in readB(Rcell[k], RB + 8*k): p.I(x)
    p.I("s_waitcnt lgkmcnt(0)")
    for n in range(12, 14): issue(16 + n, Lcell[n])
    p.I("s_waitcnt vmcnt(28)")
    for k in range(14, 16):
        for x in readB(Rcell[k], RB + 8*k): p.I(x)
    T.stamp(p, 3)
    p.I(f"""v_and_b32 v14, 31, v0
            s_lshl_b32 s44, s40, 5
            v_add_u32 v14, s44, v14
            s_mov_b32 s44, {FS}
            v_mul_lo_u32 v14, v14, s44
            v_add_u32 v14, {WS_F1}, v14""")
    poll_flags(p, 'L_P2_F1', 'v14', 16, 64)
    T.stamp(p, 4)
    p.I(f"""s_mul_i32 s58, s40, {HF_IB}
            s_add_u32 s58, s58, {WS_HF}
            s_mul_i32 s59, s49, 22
            s_mul_i32 s60, s40, {PQ_IB}
            s_lshl_b32 s44, s49, 14
            s_add_u32 s60, s60, s44
            s_add_u32 s60, s60, {WS_PQ}""")
    NK = NH + 8
    def issueA(u):
        slot = AR + 8*(u % 6)
        if u < NH:
            if u >= 20:
                p.I(f"""s_add_u32 s44, s59, {u}
                        s_min_u32 s44, s44, 85
                        s_lshl_b32 s44, s44, 11
                        s_add_u32 s44, s44, s58""")
            else:
                p.I(f"""s_add_u32 s44, s59, {u}
                        s_lshl_b32 s44, s44, 11
                        s_add_u32 s44, s44, s58""")
        else:
            p.I(f"s_add_u32 s44, s60, {(u-NH)*2048}")
        p.I(f"""buffer_load_dwordx4 {rng(slot,4)}, v2, s[28:31], s44 offen sc1
                buffer_load_dwordx4 {rng(slot+4,4)}, v2, s[28:31], s44 offen offset:1024 sc1""")
    for u in range(6): issueA(u)
    for cg in range(2):
        for rg in range(2):
            for r in range(16): p.I(f"v_mov_b32 v{ACC2(cg,rg)+r}, 0")
    LB = [RB, RB + 8]
    vm = []
    for u in range(6): vm += [('A', u)] * 2
    def wait_for(tag):
        cand = [i for i, t in enumerate(vm) if t == tag]
        if not cand: return
        n = len(vm) - 1 - max(cand)
        p.I(f"s_waitcnt vmcnt({n})")
        del vm[:max(cand) + 1]
    KVF = RB + 32
    CB = [RB + 64, RB + 96]
    OF = RB + 16
    for u in range(NH):
        wait_for(('A', u))
        slot = AR + 8*(u % 6)
        if u < NR: B = RB + 8*u
        else:
            B = LB[u & 1]
            p.I("s_waitcnt lgkmcnt(0)")
        nxt = []
        if u + 1 >= NR and u + 1 < NK:
            nxt = readB(Lcell[u + 1 - NR], LB[(u + 1) & 1])
        m = 0
        for cg in range(2):
            for rg in range(2):
                a = ACC2(cg, rg)
                p.I(f"v_mfma_f32_32x32x16_bf16 {rng(a,16)}, {rng(B+4*cg,4)}, {rng(slot+4*rg,4)}, {rng(a,16)}")
                if m < len(nxt): p.I(nxt[m])
                m += 1
        if u + 6 < NK:
            issueA(u + 6); vm.extend([('A', u + 6)] * 2)
        if u == 17:
            p.I(f"""v_and_b32 v14, 31, v0
                    s_lshl_b32 s44, s49, 5
                    v_add_u32 v14, s44, v14
                    s_mov_b32 s44, {FS}
                    v_mul_lo_u32 v14, v14, s44
                    v_add_u32 v14, {WS_FR}, v14""")
            poll_flags(p, 'L_P2_FR', 'v14', 12, 64)
            vm.clear()
            p.I(f"""s_lshl_b32 s44, s49, 13
                    s_add_u32 s44, s44, {WS_KVF}""")
            for hd in range(8):
                p.I(f"""buffer_load_dwordx4 {rng(KVF+4*hd,4)}, v2, s[28:31], s44 offen sc1
                        s_add_u32 s44, s44, 1024""")
                vm.append(('K', hd))
    T.stamp(p, 5)
    XRES = RB + 0
    def stepA(hd):
        u = NH + hd
        slot = AR + 8*(u % 6)
        wait_for(('K', hd))
        wait_for(('A', u))
        for rg in range(2):
            p.I(f"v_mfma_f32_32x32x16_bf16 {rng(CB[hd&1]+16*rg,16)}, {rng(KVF+4*hd,4)}, {rng(slot+4*rg,4)}, 0")
        if u + 6 < NK:
            issueA(u + 6); vm.extend([('A', u + 6)] * 2)
    def stepB(hd):
        for rg in range(2):
            c = CB[hd & 1] + 16*rg; o = OF + 8*(hd & 1) + 4*rg
            p.I(f"""v_add_f32 v{c+8}, {fhex(1e-6)}, v{c+8}
                    v_rcp_f32 v{c+8}, v{c+8}""")
        for rg in range(2):
            c = CB[hd & 1] + 16*rg; o = OF + 8*(hd & 1) + 4*rg
            for k in range(8): p.I(f"v_mul_f32 v{c+k}, v{c+k}, v{c+8}")
            for k in range(4): p.I(f"v_cvt_pk_bf16_f32 v{o+k}, v{c+2*k}, v{c+2*k+1}")
    def stepC(hd):
        u = NH + hd
        B = LB[u & 1]
        p.I("s_waitcnt lgkmcnt(0)")
        nxt = readB(Lcell[u + 1 - NR], LB[(u + 1) & 1]) if u + 1 < NK else []
        m = 0
        for cg in range(2):
            for rg in range(2):
                a = ACC2(cg, rg); o = OF + 8*(hd & 1) + 4*rg
                p.I(f"v_mfma_f32_32x32x16_bf16 {rng(a,16)}, {rng(B+4*cg,4)}, {rng(o,4)}, {rng(a,16)}")
                if m < len(nxt): p.I(nxt[m])
                m += 1
    stepA(0)
    for hd in range(8):
        if hd + 1 < 8: stepA(hd + 1)
        stepB(hd)
        stepC(hd)
    T.stamp(p, 6)
    XRES = 16; BRES = 24
    p.I(f"""s_and_b32 s61, s49, 1
            s_lshr_b32 s62, s49, 1
            v_and_b32 v10, 31, v0
            s_lshl_b32 s44, s40, 6
            s_lshl_b32 s45, s62, 5
            s_add_u32 s44, s44, s45
            v_add_u32 v10, s44, v10
            v_lshlrev_b32 v10, 10, v10
            s_lshl_b32 s44, s41, 7
            s_lshl_b32 s45, s61, 6
            s_add_u32 s63, s44, s45
            v_lshrrev_b32 v11, 5, v0
            v_lshl_add_u32 v13, v11, 3, v10
            v_lshlrev_b32 v14, 3, v11""")
    for g in range(4):
        p.I(f"buffer_load_dwordx2 {rng(XRES+2*g,2)}, v13, s[8:11], s63 offen offset:{g*16}")
        p.I(f"buffer_load_dwordx2 {rng(BRES+2*g,2)}, v14, s[36:39], s63 offen offset:{g*16}")
    p.I("s_barrier")
    p.I("v_lshlrev_b32 v15, 4, v0")
    for d in range(4):
        a = ACC2(d & 1, d >> 1)
        p.I(f"""s_cmp_eq_u32 s49, {d}
                s_cbranch_scc1 L_P2_SK{d}
                s_sub_u32 s44, s49, {d+1}
                s_and_b32 s44, s44, 3
                s_add_u32 s44, s44, {3*d}
                s_lshl_b32 s44, s44, 12
                v_add_u32 v1, s44, v15""")
        for g in range(4): p.I(f"ds_write_b128 v1, {rng(a+4*g,4)} offset:{g*1024}")
        p.L(f'L_P2_SK{d}')
    p.I("""s_waitcnt lgkmcnt(0)
           s_barrier
           s_mul_i32 s44, s49, 12288
           v_add_u32 v1, s44, v15""")
    RD = 64
    for k in range(3):
        for g in range(4): p.I(f"ds_read_b128 {rng(RD+16*k+4*g,4)}, v1 offset:{k*4096+g*1024}")
    OWN = 128
    for d in range(4):
        a = ACC2(d & 1, d >> 1)
        p.I(f"""s_cmp_eq_u32 s49, {d}
                s_cbranch_scc0 L_P2_MV{d}""")
        for r in range(16): p.I(f"v_mov_b32 v{OWN+r}, v{a+r}")
        p.L(f'L_P2_MV{d}')
    p.I("s_waitcnt vmcnt(0) lgkmcnt(0)")
    for r in range(16):
        p.I(f"""v_add_f32 v{RD+r}, v{RD+r}, v{RD+16+r}
                v_add_f32 v{OWN+r}, v{OWN+r}, v{RD+32+r}
                v_add_f32 v{OWN+r}, v{OWN+r}, v{RD+r}""")
    p.I("s_mov_b32 s46, 0xffff0000")
    for g in range(4):
        for hlf in range(2):
            xr = XRES + 2*g + hlf; br = BRES + 2*g + hlf; r0 = OWN + 4*g + 2*hlf
            p.I(f"""v_lshlrev_b32 v40, 16, v{xr}
                    v_and_b32 v41, s46, v{xr}
                    v_lshlrev_b32 v42, 16, v{br}
                    v_and_b32 v43, s46, v{br}
                    v_add_f32 v40, v40, v42
                    v_add_f32 v41, v41, v43
                    v_add_f32 v{r0}, v{r0}, v40
                    v_add_f32 v{r0+1}, v{r0+1}, v41
                    v_cvt_pk_bf16_f32 v{48+2*g+hlf}, v{r0}, v{r0+1}""")
    p.I(f"""v_permlane32_swap_b32 v48, v50
            v_permlane32_swap_b32 v49, v51
            v_permlane32_swap_b32 v52, v54
            v_permlane32_swap_b32 v53, v55
            v_lshl_add_u32 v13, v11, 4, v10
            buffer_store_dwordx4 v[48:51], v13, s[32:35], s63 offen
            buffer_store_dwordx4 v[52:55], v13, s[32:35], s63 offen offset:32""")
    T.stamp(p, 7)
    dump_ts(p, cfg, T, 8)

if __name__ == '__main__':
    cfg = Cfg()
    out = f'cdna_kernels/{NAME}.s'
    for a in sys.argv[1:]:
        if a == 'ts': cfg.ts = True
        elif a.startswith('rot='): cfg.rot = a[4:]
        elif a.startswith('fullpt='): cfg.fullpt = int(a[7:])
        elif a.startswith('out='): out = a[4:]
        elif a == 'fullwait0': cfg.fullwait0 = True
        elif a == 'dbgstats': cfg.dbgstats = True
    p = build(cfg)
    s = p.text()
    open(out, 'w').write(s)
    print('written', out, p.stats)
```

```python
import sys
sys.path.insert(0, 'dev')
from asmlib import Prog

NAME = 'parallel_sum__linear_attn_block__dense_activation_gelu__prompt'

FS = 32
WS_F1 = 0x1000
WS_FK = 0x9000
WS_FR = 0xD000
WS_RP = 0x140000
WS_CP = 0x180000
WS_KVF = 0x10000
WS_ZP = 0x20000
WS_KVP = 0x600000 + 0x400000
WS_PQ = 0x200000
WS_HF = 0x400000
WS_TS = 0xC00000
WS_DBG = 0xC40000
WS_SIZE = 0x1000000
HF_IB = 86 * 2048
PQ_IB = 32 * 2048
SLOT = 40960
MISC = 3 * SLOT
L_FULL = MISC
L_FREE = MISC + 64
L_ISS = MISC + 128
L_STAT = MISC + 132
L_GISS = MISC + 136
L_ST = MISC + 256
L_RSTD = MISC + 2304
L_CS = MISC + 2816
MSEG = MISC + 8192
LDS_SIZE = 163840

SPIN_MAX = 1 << 22

class Cfg:
    rot = 'i2j'
    ts = False
    fullpt = 20
    stop_after = None
    fullwait0 = False
    dbgstats = False
    tschunk = False
    tscyc = False
    tsallcyc = False
    dbgout = False
    rot2 = True
    tsA = False
    tsR = False
    kv_issue = 14
    slp_red = 4
    slp_kv = 8
    slp_f1 = 4
    asc1 = True
    nodot = False

def ts(p, cfg, idx, sreg=90):
    if not cfg.ts: return
    p.I(f"""
        s_memrealtime s[90:91]
        s_lshl_b32 s92, s2, 3
        s_add_u32 s92, s92, s3
        s_lshl_b32 s92, s92, 7
        s_add_u32 s92, s92, {WS_TS + idx*8}
        s_waitcnt lgkmcnt(0)
        v_mov_b32 v250, s90
        v_mov_b32 v251, s91
        v_mov_b32 v252, 0
    """) if False else None

class TS:
    def __init__(self, cfg): self.on = cfg.ts; self.cyc = cfg.tsallcyc
    def stamp(self, p, idx):
        if not self.on: return
        p.I(f"{'s_memtime' if self.cyc else 's_memrealtime'} s[{86+2*idx}:{87+2*idx}]")

def srd(p, d, lo, size):
    p.I(f"""s_mov_b32 s{d}, s{lo}
            s_and_b32 s{d+1}, s{lo+1}, 0xffff
            s_mov_b32 s{d+2}, {size}
            s_mov_b32 s{d+3}, 0x20000""")

def spin_lds_ge(p, name, vaddr, off, val, vt='v1', st='s44', cnt='s45'):
    p.I(f"""s_mov_b32 {cnt}, 0
        {name}_sp:
            ds_read_b32 {vt}, {vaddr} offset:{off}
            s_add_u32 {cnt}, {cnt}, 1
            s_waitcnt lgkmcnt(0)
            v_readfirstlane_b32 {st}, {vt}
            s_cmp_ge_u32 {cnt}, {SPIN_MAX}
            s_cbranch_scc1 {name}_ok
            s_cmp_ge_u32 {st}, {val}
            s_cbranch_scc0 {name}_sp
        {name}_ok:""")

def poll_flags(p, name, vaddr, vd, nl, sleep=1):
    mask = (1 << nl) - 1
    p.I(f"""s_mov_b32 s45, 0
        {name}_pl:
            buffer_load_dwordx2 v[{vd}:{vd+1}], {vaddr}, s[28:31], 0 offen sc1
            s_add_u32 s45, s45, 1
            s_waitcnt vmcnt(0)
            v_cmp_ne_u32 vcc, s42, v{vd}
            v_cmp_ne_u32 s[46:47], s43, v{vd+1}
            s_or_b64 vcc, vcc, s[46:47]""")
    if nl < 64:
        lo = mask & 0xffffffff; hi = mask >> 32
        p.I(f"""s_and_b32 vcc_lo, vcc_lo, {hex(lo)}
                s_and_b32 vcc_hi, vcc_hi, {hex(hi)}""")
    p.I(f"""s_cmp_eq_u64 vcc, 0
            s_cbranch_scc1 {name}_ok
            s_cmp_ge_u32 s45, {SPIN_MAX >> 4}
            s_cbranch_scc1 {name}_ok
            s_sleep {sleep}
            s_branch {name}_pl
        {name}_ok:""")

def write_flag(p, soff):
    p.I(f"""v_mov_b32 v60, s42
            v_mov_b32 v61, s43
            v_mov_b32 v62, 0
            s_mov_b64 exec, 1
            buffer_store_dwordx2 v[60:61], v62, s[28:31], {soff} offen sc1
            s_mov_b64 exec, -1""")

def build(cfg=Cfg()):
    p = Prog()
    T = TS(cfg)
    K = f'{NAME}_kernel'
    p.raw(open('cdna_kernels/%s.s.ref' % NAME).read().split('; Override launch')[0].rstrip())
    p.raw('; Override launch geometry by editing the next line (default: block=256,')
    p.raw(f'; @launch grid=(256,1,1) block=(512,1,1) lds={LDS_SIZE}')
    p.raw('.amdgcn_target "amdgcn-amd-amdhsa--gfx950"\n.text')
    p.raw(f'.globl {K}\n.p2align 8\n.type {K},@function')
    p.L(K)
    p.I(f"""
        s_cmp_ge_u32 s2, 256
        s_cbranch_scc1 L_END
        s_load_dwordx16 s[64:79], s[0:1], 0
        s_load_dwordx2 s[80:81], s[0:1], 64
        s_load_dwordx2 s[84:85], s[0:1], 80
    """)
    T.stamp(p, 0)
    p.I(f"""
        v_lshrrev_b32 v1, 6, v0
        v_and_b32 v0, 63, v0
        v_readfirstlane_b32 s3, v1
        s_and_b32 s44, s2, 7
        s_lshr_b32 s45, s2, 3
        s_lshr_b32 s46, s44, 2
        s_lshl_b32 s46, s46, 3
        s_and_b32 s47, s45, 7
        s_add_u32 s4, s46, s47
        s_lshr_b32 s46, s45, 3
        s_lshr_b32 s6, s46, 1
        s_and_b32 s47, s46, 1
        s_and_b32 s48, s44, 3
        s_lshl_b32 s48, s48, 1
        s_add_u32 s48, s48, s47
        s_lshl_b32 s47, s6, 3
        s_add_u32 s5, s48, s47
        s_lshl_b32 s40, s44, 2
        s_and_b32 s47, s45, 3
        s_add_u32 s40, s40, s47
        s_lshr_b32 s41, s45, 2
    """)
    if cfg.rot == 'i2j':
        p.I("s_lshl_b32 s7, s46, 1\n s_add_u32 s7, s7, s4\n s_and_b32 s47, s44, 1\n s_add_u32 s7, s7, s47\n s_and_b32 s7, s7, 7")
    elif cfg.rot == 'none':
        p.I("s_mov_b32 s7, 0")
    elif cfg.rot == 'i':
        p.I("s_and_b32 s7, s4, 7")
    elif cfg.rot == 'half':
        p.I("s_add_u32 s7, s46, s4\n s_and_b32 s7, s7, 3\n s_lshl_b32 s7, s7, 1")
    p.I("s_waitcnt lgkmcnt(0)")
    srd(p, 28, 84, WS_SIZE)
    p.I("""s_cmp_ge_u32 s3, 4
           s_cbranch_scc1 L_HELPER""")
    compute_waves(p, cfg, T)
    p.L('L_HELPER')
    helper_waves(p, cfg, T)
    p.L('L_END')
    p.I("s_endpgm")
    p.raw(f""".section .rodata,"a"
.p2align 6
.amdhsa_kernel {K}
  .amdhsa_next_free_vgpr 256
  .amdhsa_next_free_sgpr 102
  .amdhsa_accum_offset 256
  .amdhsa_group_segment_fixed_size 0
  .amdhsa_kernarg_size 88
  .amdhsa_user_sgpr_count 2
  .amdhsa_user_sgpr_kernarg_segment_ptr 1
  .amdhsa_system_sgpr_workgroup_id_x 1
.end_amdhsa_kernel""")
    return p

def dump_ts(p, cfg, T, n):
    if not cfg.ts: return
    if cfg.dbgout:
        p.I(f"""s_load_dwordx2 s[84:85], s[0:1], 72
                s_waitcnt lgkmcnt(0)
                s_mov_b32 s28, s84
                s_and_b32 s29, s85, 0xffff
                s_mov_b32 s30, 256
                s_mov_b32 s31, 0x20000
                s_cmp_ge_u32 s3, 4
                s_cselect_b32 s44, 32, 0
                v_mov_b32 v6, s44
                s_mov_b64 exec, 1""")
        for k in range(1, n):
            p.I(f"""s_sub_u32 s45, s{86+2*k}, s86
                    v_mov_b32 v2, s45
                    buffer_atomic_umax v2, v6, s[28:31], 0 offen offset:{4*k}""")
        p.I("s_mov_b64 exec, -1")
        return
    p.I(f"""s_waitcnt lgkmcnt(0)
            s_lshl_b32 s44, s2, 3
            s_add_u32 s44, s44, s3
            s_lshl_b32 s44, s44, 6
            s_add_u32 s44, s44, {WS_TS}
            v_mov_b32 v6, 0""")
    for k in range(0, 8, 4):
        p.I(f"""v_mov_b32 v2, s{86+2*k}
                v_mov_b32 v3, s{88+2*k}
                v_mov_b32 v4, s{90+2*k}
                v_mov_b32 v5, s{92+2*k}
                s_mov_b64 exec, 1
                buffer_store_dwordx4 v[2:5], v6, s[28:31], s44 offen offset:{k*4}
                s_mov_b64 exec, -1""")

def epoch_tag(p):
    p.I("""s_load_dwordx2 s[42:43], s[84:85], 0
           s_waitcnt lgkmcnt(0)
           s_mul_i32 s44, s42, 0x9E3779B1
           s_mul_i32 s43, s43, 0x85EBCA6B
           s_add_u32 s43, s43, s42
           s_add_u32 s43, s43, 0xC2B2AE35
           s_add_u32 s42, s44, 0x7F4A7C15""")

VXA = [2, 3, 4, 5]; VWA = 6; VFL = 7; VFA = 8
XS = [10, 12]; XQ = [11, 13]; CS = [14, 15, 16]; VB1 = [17, 18]
def XF(b, rg): return 20 + 8*b + 4*rg
def WF(b, t): return 36 + 12*b + 4*t
def ACC(t, rg): return 160 + 32*t + 16*rg
def rng(a, n): return f"v[{a}:{a+n-1}]"

def compute_waves(p, cfg, T):
    p.I("""s_lshr_b32 s50, s3, 1
           s_and_b32 s51, s3, 1""")
    p.I(f"""s_cmp_lg_u32 s3, 0
            s_cbranch_scc1 L_C_NOINIT
            v_lshlrev_b32 v1, 2, v0
            v_add_u32 v1, {MISC}, v1
            v_cmp_eq_u32 vcc, 8, v0
            v_cndmask_b32 v2, 0, 2, vcc
            ds_write_b32 v1, v2
        L_C_NOINIT:""")
    epoch_tag(p)
    p.I("s_barrier")
    srd(p, 36, 74, 2752)
    p.I("""v_and_b32 v60, 31, v0
           v_lshrrev_b32 v61, 5, v0
           v_bfe_u32 v62, v0, 1, 3
           s_lshl_b32 s44, s50, 13
           v_lshlrev_b32 v63, 7, v60
           v_add_u32 v63, s44, v63""")
    for ks in range(4):
        p.I(f"""v_add_u32 v64, {2*ks}, v61
                v_xor_b32 v64, v64, v62
                v_lshlrev_b32 v64, 4, v64
                v_add_u32 v{VXA[ks]}, v63, v64""")
    p.I(f"""v_bfe_u32 v64, v0, 2, 2
            v_lshl_add_u32 v65, v61, 3, v64
            v_lshlrev_b32 v65, 7, v65
            v_lshrrev_b32 v66, 1, v64
            v_xor_b32 v66, s51, v66
            v_lshl_add_u32 v65, v66, 6, v65
            v_bfe_u32 v66, v0, 4, 1
            v_lshl_add_u32 v65, v66, 5, v65
            v_and_b32 v66, 3, v0
            v_lshl_add_u32 v65, v66, 3, v65
            v_add_u32 v{VWA}, 16384, v65
            v_mov_b32 v{VFA}, {MISC}
            v_mov_b32 v9, 1
            s_mov_b32 s52, 0x3f803f80""")
    for r in range(160, 256): p.I(f"v_mov_b32 v{r}, 0")
    p.I(f"""v_and_b32 v60, 31, v0
            v_lshlrev_b32 v60, 1, v60
            s_cmp_eq_u32 s6, 0
            s_cbranch_scc0 L_C_B1B
            s_lshl_b32 s53, s5, 1
            s_add_u32 s54, s53, s51
            s_mov_b32 s53, 64
            s_branch L_C_B1D
        L_C_B1B:
            s_sub_u32 s53, s5, 8
            s_lshl_b32 s53, s53, 2
            s_add_u32 s53, s53, 16
            s_add_u32 s53, s53, s51
            s_add_u32 s54, s53, 2
        L_C_B1D:
            s_lshl_b32 s55, s53, 6
            s_lshl_b32 s56, s54, 6
            buffer_load_ushort v{VB1[0]}, v60, s[36:39], s55 offen
            buffer_load_ushort v{VB1[1]}, v60, s[36:39], s56 offen""")
    T.stamp(p, 1)
    p.I("""s_cmp_eq_u32 s6, 0
           s_cbranch_scc0 L_TYPEB""")
    main_loop(p, cfg, T, 'A')
    T.stamp(p, 3)
    stats(p, cfg, 'A')
    T.stamp(p, 4)
    epilogue_A(p, cfg, T)
    p.L('L_TYPEB')
    main_loop(p, cfg, T, 'B')
    T.stamp(p, 3)
    stats(p, cfg, 'B')
    T.stamp(p, 4)
    epilogue_B(p, cfg, T)

def frag_reads(ks, b):
    def X(rg): return f"ds_read_b128 {rng(XF(b, rg), 4)}, v{VXA[ks]} offset:{rg*4096}"
    def W(t, h): return f"ds_read_b64_tr_b16 {rng(WF(b, t)+2*h, 2)}, v{VWA} offset:{t*8192 + ks*2048 + h*512}"
    return [X(0), W(0, 0), W(0, 1), X(1), W(1, 0), W(1, 1), W(2, 0), W(2, 1)]

def main_loop(p, cfg, T, ty):
    tr = {'A': [False, False, True], 'B': [True, True, True]}[ty]
    spin_lds_ge(p, f'L_{ty}_F0', f'v{VFA}', 0, 2)
    T.stamp(p, 2)
    p.I("s_waitcnt lgkmcnt(0)")
    for x in frag_reads(0, 0): p.I(x)
    p.I(f"""s_mov_b32 s57, 0
           s_mov_b32 s58, 0
           s_mov_b32 s48, {(-2*SLOT) & 0xffffffff}
           s_mov_b32 s49, {SLOT}""")
    p.L(f'L_{ty}_LOOP')
    q = [('F', 0, n) for n in range(8)]
    def wait(item):
        if item not in q: return
        k = q.index(item)
        p.I(f"s_waitcnt lgkmcnt({len(q) - 1 - k})")
        del q[:k + 1]
    needs = {0: 2, 1: 3, 2: 5, 3: 5, 4: 7, 5: 7}
    order = [(t, rg) for t in range(3) for rg in range(2)]
    for ks in range(4):
        b = ks & 1; nb = b ^ 1
        nks = (ks + 1) & 3
        rd = frag_reads(nks, nb)
        fill = {m: [] for m in range(6)}
        for n, x in enumerate(rd): fill[n // 2].append((x, ('F', nks, n)))
        pre = []
        if ks == 1:
            fill[4].append((f"s_lshl_b32 s59, s57, 2", None))
            fill[4].append((f"v_add_u32 v63, s59, v{VFA}", None))
            fill[5].append((f"ds_read_b32 v{VFL}, v63 offset:4", ('FL',)))
        if ks == 2:
            fill[4].append(("@waitFL", None))
            fill[4].append((f"v_readfirstlane_b32 s44, v{VFL}", None))
            fill[4].append((f"s_cmp_eq_u32 s58, 2", None))
            fill[4].append((f"s_cselect_b32 s59, s48, s49", None))
            fill[5].append(("@checkfull", None))
        if ks == 3:
            pre = [f"v_add_u32 v{VXA[0]}, s59, v{VXA[0]}", f"v_add_u32 v{VWA}, s59, v{VWA}"]
            fill[1].append((f"v_add_u32 v{VXA[1]}, s59, v{VXA[1]}", None))
            fill[2].append((f"v_add_u32 v{VXA[2]}, s59, v{VXA[2]}", None))
            fill[3].append((f"v_add_u32 v{VXA[3]}, s59, v{VXA[3]}", None))
            fill[4].append(("@free", None))
            fill[5].append(("s_add_u32 s58, s58, 1", None))
            fill[5].append(("s_cmp_eq_u32 s58, 3", None))
            fill[5].append(("s_cselect_b32 s58, 0, s58", None))
        for x in pre: p.I(x)
        for m, (t, rg) in enumerate(order):
            wait(('F', ks, needs[m]))
            a = ACC(t, rg)
            if tr[t]: p.I(f"v_mfma_f32_32x32x16_bf16 {rng(a,16)}, {rng(WF(b,t),4)}, {rng(XF(b,rg),4)}, {rng(a,16)}")
            else:     p.I(f"v_mfma_f32_32x32x16_bf16 {rng(a,16)}, {rng(XF(b,rg),4)}, {rng(WF(b,t),4)}, {rng(a,16)}")
            for x, item in fill[m]:
                if x == "@waitFL": wait(('FL',)); continue
                if x == "@checkfull":
                    p.I(f"""s_cmp_ge_u32 s44, 2
                            s_cbranch_scc1 L_{ty}_FOK
                            v_add_u32 v1, 4, v63""")
                    spin_lds_ge(p, f'L_{ty}_FS', 'v1', 0, 2, vt=f'v{VFL}')
                    p.L(f'L_{ty}_FOK')
                    if cfg.tschunk:
                        p.I(f"""{'s_memtime' if cfg.tscyc else 's_memrealtime'} s[46:47]
                               s_waitcnt lgkmcnt(0)
                               s_mov_b32 m0, s57
                               v_writelane_b32 v19, s46, m0""")
                    continue
                if x == "@free":
                    p.I(f"""s_mov_b64 exec, 1
                            ds_add_u32 v63, v9 offset:64
                            s_mov_b64 exec, -1""")
                    q.append(('FREE',))
                    continue
                p.I(x)
                if item is not None: q.append(item)
    p.C(f"queue at back-edge: {q}")
    p.I(f"""s_add_u32 s57, s57, 1
            s_cmp_lt_u32 s57, 8
            s_cbranch_scc1 L_{ty}_LOOP
            s_waitcnt lgkmcnt(0)""")
    main_loop.q_end = list(q)
    if cfg.tschunk:
        p.I(f"""s_lshl_b32 s44, s2, 8
               s_lshl_b32 s45, s3, 5
               s_add_u32 s44, s44, s45
               s_add_u32 s44, s44, {WS_DBG + 64}
               v_lshlrev_b32 v21, 2, v0
               s_mov_b64 exec, 0xff
               buffer_store_dword v19, v21, s[28:31], s44 offen
               s_mov_b64 exec, -1""")

def half_sum(p, r, t):
    p.I(f"""v_mov_b32 v{t}, v{r}
            v_permlane32_swap_b32 v{r}, v{t}
            v_add_f32 v{r}, v{r}, v{t}""")

MEAN = [60, 61]; STD = [62, 64]; RSTD = [66, 68]
ROWF = [72, 76]
COLF = [80, 84, 88]

def stats(p, cfg, ty):
    spin_lds_ge(p, f'L_{ty}_ST', f'v{VFA}', L_STAT - MISC, 1)
    p.I(f"""v_and_b32 v20, 31, v0
            s_lshl_b32 s44, s50, 10
            s_add_u32 s44, s44, {L_ST}
            v_lshl_add_u32 v21, v20, 4, s44
            s_lshl_b32 s45, s51, 7
            s_add_u32 s45, s45, {L_CS}
            v_lshl_add_u32 v22, v20, 2, s45
            ds_read_b128 v[24:27], v21
            ds_read_b128 v[28:31], v21 offset:512
            ds_read_b32 v{CS[0]}, v22
            ds_read_b32 v{CS[1]}, v22 offset:256
            ds_read_b32 v{CS[2]}, v22 offset:512
            s_mov_b32 s46, 0xffff0000
            v_cmp_gt_u32 vcc, 32, v0
            s_waitcnt lgkmcnt(0)""")
    for rg in range(2):
        m, sd, rs = MEAN[rg], STD[rg], RSTD[rg]
        f = ROWF[rg]; b = 24 + 4*rg
        p.I(f"""v_mov_b32 v{sd}, v{b+1}
                v_mov_b32 v{rs}, v{b+2}
                v_sub_f32 v32, 0, v{b}
                v_cvt_pk_bf16_f32 v{f}, v32, v32
                v_and_b32 v33, s46, v{f}
                v_sub_f32 v33, v32, v33
                v_cvt_pk_bf16_f32 v{f+1}, v33, v{sd}
                v_and_b32 v34, s46, v{f+1}
                v_sub_f32 v34, v{sd}, v34
                v_mov_b32 v35, 0
                v_cvt_pk_bf16_f32 v{f+2}, v34, v35
                v_cndmask_b32 v{f}, 0, v{f}, vcc
                v_cndmask_b32 v{f+1}, 0, v{f+1}, vcc
                v_cndmask_b32 v{f+2}, 0, v{f+2}, vcc
                v_mov_b32 v{f+3}, 0""")
    p.I("s_waitcnt vmcnt(0)")
    for t in range(3):
        f = COLF[t]; c = CS[t]
        b1 = None
        if ty == 'A' and t == 2: b1 = VB1[1]
        if ty == 'B' and t >= 1: b1 = VB1[t-1]
        p.I(f"""v_cvt_pk_bf16_f32 v24, v{c}, v{c}
                v_and_b32 v25, s46, v24
                v_sub_f32 v26, v{c}, v25
                v_cvt_pk_bf16_f32 v{f}, v25, v26""")
        if b1 is None:
            p.I(f"""v_lshrrev_b32 v{f+1}, 16, v25
                    v_mov_b32 v{f+2}, 0""")
        else:
            p.I(f"""v_lshrrev_b32 v27, 16, v25
                    v_lshl_or_b32 v{f+1}, v{b1}, 16, v27
                    v_mov_b32 v{f+2}, v{b1}""")
        p.I(f"v_mov_b32 v{f+3}, 0")
    tr = {'A': [False, False, True], 'B': [True, True, True]}[ty]
    for t in range(3):
        for rg in range(2):
            a = ACC(t, rg)
            if tr[t]: p.I(f"v_mfma_f32_32x32x16_bf16 {rng(a,16)}, {rng(COLF[t],4)}, {rng(ROWF[rg],4)}, {rng(a,16)}")
            else:     p.I(f"v_mfma_f32_32x32x16_bf16 {rng(a,16)}, {rng(ROWF[rg],4)}, {rng(COLF[t],4)}, {rng(a,16)}")

K1 = -2.0 * 1.4426950408889634 * 0.7978845608028654
K2 = K1 * 0.044715
import struct
def fhex(x): return '0x%08x' % struct.unpack('<I', struct.pack('<f', x))[0]

def gelu_tile(p, acc, rg, out, tmp):
    A1, A2, SD = GA1[rg], GA2[rg], STD[rg]
    for h in range(2):
        prs = [acc + 8*h + 2*k for k in range(4)]
        q = [tmp + 2*k for k in range(4)]; e = [tmp + 8 + 2*k for k in range(4)]
        for k in range(4): p.I(f"v_pk_mul_f32 v[{q[k]}:{q[k]+1}], v[{prs[k]}:{prs[k]+1}], v[{prs[k]}:{prs[k]+1}]")
        for k in range(4): p.I(f"v_pk_fma_f32 v[{q[k]}:{q[k]+1}], v[{q[k]}:{q[k]+1}], v[{A2}:{A2+1}], v[{A1}:{A1+1}] op_sel_hi:[1,0,0]")
        for k in range(4): p.I(f"v_pk_mul_f32 v[{q[k]}:{q[k]+1}], v[{q[k]}:{q[k]+1}], v[{prs[k]}:{prs[k]+1}]")
        for k in range(4):
            p.I(f"v_exp_f32 v{e[k]}, v{q[k]}")
            p.I(f"v_exp_f32 v{e[k]+1}, v{q[k]+1}")
        for k in range(4): p.I(f"v_pk_fma_f32 v[{e[k]}:{e[k]+1}], v[{e[k]}:{e[k]+1}], v[{SD}:{SD+1}], v[{SD}:{SD+1}] op_sel_hi:[1,0,0]")
        for k in range(4):
            p.I(f"v_rcp_f32 v{e[k]}, v{e[k]}")
            p.I(f"v_rcp_f32 v{e[k]+1}, v{e[k]+1}")
        for k in range(4): p.I(f"v_pk_mul_f32 v[{e[k]}:{e[k]+1}], v[{e[k]}:{e[k]+1}], v[{prs[k]}:{prs[k]+1}]")
        for k in range(4): p.I(f"v_cvt_pk_bf16_f32 v{out+4*h+k}, v{e[k]}, v{e[k]+1}")

GA1 = [92, 94]; GA2 = [96, 98]; QA = [100, 102]
LOG2E = 1.4426950408889634

def lane_consts(p):
    p.I(f"""s_mov_b32 s44, {fhex(K1)}
            s_mov_b32 s45, {fhex(K2)}
            s_mov_b32 s46, {fhex(LOG2E)}""")
    for rg in range(2):
        rs = RSTD[rg]
        p.I(f"""v_mul_f32 v{GA1[rg]}, s44, v{rs}
                v_mul_f32 v24, v{rs}, v{rs}
                v_mul_f32 v24, v24, v{rs}
                v_mul_f32 v{GA2[rg]}, s45, v24
                v_mul_f32 v{QA[rg]}, s46, v{rs}""")

def phi_tile_T(p, acc, rg, out, tmp):
    rs, qa = RSTD[rg], QA[rg]
    for h in range(2):
        prs = [acc + 8*h + 2*k for k in range(4)]
        t = [tmp + 2*k for k in range(4)]; y = [tmp + 8 + 2*k for k in range(4)]
        for k in range(4): p.I(f"v_pk_mul_f32 v[{t[k]}:{t[k]+1}], v[{prs[k]}:{prs[k]+1}], v[{qa}:{qa+1}] op_sel_hi:[1,0]")
        for k in range(4): p.I(f"v_pk_fma_f32 v[{y[k]}:{y[k]+1}], v[{prs[k]}:{prs[k]+1}], v[{rs}:{rs+1}], v[104:105] op_sel_hi:[1,0,0]")
        for k in range(4):
            p.I(f"v_exp_f32_e64 v{t[k]}, v{t[k]} clamp")
            p.I(f"v_exp_f32_e64 v{t[k]+1}, v{t[k]+1} clamp")
        for k in range(4):
            p.I(f"v_max_f32 v{y[k]}, v{y[k]}, v104")
            p.I(f"v_max_f32 v{y[k]+1}, v{y[k]+1}, v104")
        for k in range(4): p.I(f"v_pk_add_f32 v[{t[k]}:{t[k]+1}], v[{t[k]}:{t[k]+1}], v[{y[k]}:{y[k]+1}]")
        for k in range(4): p.I(f"v_cvt_pk_bf16_f32 v{out+4*h+k}, v{t[k]}, v{t[k]+1}")

def store_frags(p, out, sbase, rg, nstores):
    for u in range(2):
        p.I(f"buffer_store_dwordx4 {rng(out+4*u,4)}, v105, s[28:31], {sbase} offen offset:{u*2048 + rg*1024} sc1")
    return nstores + 2

def h_base(p, sreg, tile_sreg):
    p.I(f"""s_mul_i32 {sreg}, s60, {HF_IB}
            s_lshl_b32 s44, {tile_sreg}, 12
            s_add_u32 {sreg}, {sreg}, s44
            s_add_u32 {sreg}, {sreg}, {WS_HF}""")

def f1_flag(p, name):
    p.I(f"""s_lshl_b32 s44, s60, 5
            s_lshl_b32 s45, s5, 1
            s_add_u32 s44, s44, s45
            s_add_u32 s44, s44, s51
            s_mul_i32 s44, s44, {FS}
            s_add_u32 s44, s44, {WS_F1}""")
    write_flag(p, 's44')

def epi_common(p):
    lane_consts(p)
    p.I(f"""v_mov_b32 v104, {fhex(1e-6)}
            v_lshlrev_b32 v105, 4, v0
            s_lshl_b32 s60, s4, 1
            s_add_u32 s60, s60, s50""")

def epilogue_B(p, cfg, T):
    epi_common(p)
    OUT = [[108, 116], [124, 132]]
    p.I(f"""s_sub_u32 s61, s5, 8
            s_lshl_b32 s61, s61, 2
            s_lshl_b32 s44, s51, 1
            s_add_u32 s61, s61, s44
            s_lshl_b32 s61, s61, 11
            s_mul_i32 s44, s60, {PQ_IB}
            s_add_u32 s61, s61, s44
            s_add_u32 s61, s61, {WS_PQ}""")
    for rg in range(2):
        phi_tile_T(p, ACC(0, rg), rg, OUT[0][rg], 140)
        store_frags(p, OUT[0][rg], 's61', rg, 0)
    for t in (1, 2):
        tile = 's53' if t == 1 else 's54'
        p.I(f"""s_cmp_lt_u32 {tile}, 43
                s_cbranch_scc0 L_B_SKIP{t}""")
        h_base(p, 's61', tile)
        for rg in range(2):
            o = OUT[t & 1][rg]
            gelu_tile(p, ACC(t, rg), rg, o, 140)
            store_frags(p, o, 's61', rg, 0)
        p.L(f'L_B_SKIP{t}')
    T.stamp(p, 5)
    p.I("s_waitcnt vmcnt(0)")
    T.stamp(p, 6)
    f1_flag(p, 'B')
    T.stamp(p, 7)
    dump_ts(p, cfg, T, 8)
    p.I("s_endpgm")

def epilogue_A(p, cfg, T):
    epi_common(p)
    p.I(f"""s_lshl_b32 s44, s50, 8
            s_add_u32 s44, s44, {L_RSTD}
            v_lshrrev_b32 v22, 5, v0
            v_lshl_add_u32 v22, v22, 4, s44""")
    RB = [108, 124]
    for rg in range(2):
        for g in range(4):
            p.I(f"ds_read_b128 {rng(RB[rg]+4*g,4)}, v22 offset:{rg*128 + g*32}")
    p.I(f"""s_mov_b32 s44, {fhex(LOG2E)}
            v_mov_b32 v106, s44
            s_waitcnt lgkmcnt(0)""")
    KP = [20, 28]; VP = [36, 44]
    tmp = 140
    for rg in range(2):
        a = ACC(0, rg); rb = RB[rg]
        for h in range(2):
            prs = [a + 8*h + 2*k for k in range(4)]; rr = [rb + 8*h + 2*k for k in range(4)]
            y = [tmp + 2*k for k in range(4)]; t = [tmp + 8 + 2*k for k in range(4)]
            for k in range(4): p.I(f"v_pk_mul_f32 v[{y[k]}:{y[k]+1}], v[{prs[k]}:{prs[k]+1}], v[{rr[k]}:{rr[k]+1}]")
            for k in range(4): p.I(f"v_pk_mul_f32 v[{t[k]}:{t[k]+1}], v[{y[k]}:{y[k]+1}], v[106:107] op_sel_hi:[1,0]")
            for k in range(4):
                p.I(f"v_exp_f32_e64 v{t[k]}, v{t[k]} clamp")
                p.I(f"v_exp_f32_e64 v{t[k]+1}, v{t[k]+1} clamp")
            for k in range(4): p.I(f"v_pk_add_f32 v[{y[k]}:{y[k]+1}], v[{y[k]}:{y[k]+1}], v[104:105] op_sel_hi:[1,0]")
            for k in range(4):
                p.I(f"v_max_f32 v{y[k]}, v{y[k]}, v104")
                p.I(f"v_max_f32 v{y[k]+1}, v{y[k]+1}, v104")
            for k in range(4): p.I(f"v_pk_add_f32 v[{t[k]}:{t[k]+1}], v[{t[k]}:{t[k]+1}], v[{y[k]}:{y[k]+1}]")
            for k in range(4): p.I(f"v_cvt_pk_bf16_f32 v{KP[rg]+4*h+k}, v{t[k]}, v{t[k]+1}")
        a = ACC(1, rg)
        for k in range(8):
            p.I(f"v_pk_mul_f32 v[{tmp+2*(k%4)}:{tmp+2*(k%4)+1}], v[{a+2*k}:{a+2*k+1}], v[{rb+2*k}:{rb+2*k+1}]")
            p.I(f"v_cvt_pk_bf16_f32 v{VP[rg]+k}, v{tmp+2*(k%4)}, v{tmp+2*(k%4)+1}")
    for r in range(52, 56): p.I(f"v_mov_b32 v{r}, s52")
    KV = ACC(0, 0); ZZ = ACC(0, 1)
    first = True
    for rg in range(2):
        for t in range(2):
            c1 = '0' if first else rng(KV, 16); c2 = '0' if first else rng(ZZ, 16)
            p.I(f"v_mfma_f32_32x32x16_bf16 {rng(KV,16)}, {rng(KP[rg]+4*t,4)}, {rng(VP[rg]+4*t,4)}, {c1}")
            p.I(f"v_mfma_f32_32x32x16_bf16 {rng(ZZ,16)}, {rng(KP[rg]+4*t,4)}, v[52:55], {c2}")
            first = False
    h_base(p, 's61', 's54')
    OUT = [108, 116]
    gelu_tile(p, ACC(2, 0), 0, OUT[0], 140)
    p.I("""v_and_b32 v56, 16, v0
           v_cmp_ne_u32 vcc, 0, v56""")
    GK = 124; GZ = 36
    GZ = 140
    for g in range(2):
        for half in range(2):
            a = GK + 8*g + 4*half; z = GZ + 8*g + 4*half
            for k in range(2):
                i_ = 2*half + k
                p.I(f"v_cndmask_b32 v{a+k}, v{KV+4*g+i_}, v{KV+8+4*g+i_}, vcc")
                p.I(f"v_cndmask_b32 v{z+k}, v{ZZ+4*g+i_}, v{ZZ+8+4*g+i_}, vcc")
            p.I(f"""v_mov_b32 v{a+2}, s42
                    v_mov_b32 v{a+3}, s43
                    v_mov_b32 v{z+2}, s42
                    v_mov_b32 v{z+3}, s43""")
    p.I(f"""s_lshl_b32 s62, s5, 2
            s_lshl_b32 s44, s51, 1
            s_add_u32 s62, s62, s44
            s_lshl_b32 s44, s62, 16
            s_lshl_b32 s45, s60, 11
            s_add_u32 s44, s44, s45
            s_add_u32 s44, s44, {WS_KVP}
            v_bfe_u32 v56, v0, 4, 1
            v_lshlrev_b32 v57, 16, v56
            v_lshrrev_b32 v58, 5, v0
            v_lshl_add_u32 v57, v58, 9, v57
            v_and_b32 v59, 15, v0
            v_lshl_add_u32 v57, v59, 4, v57""")
    for g in range(2):
        for half in range(2):
            p.I(f"buffer_store_dwordx4 {rng(GK + 8*g + 4*half, 4)}, v57, s[28:31], s44 offen offset:{g*1024 + half*256} sc1")
    p.I(f"""s_lshl_b32 s45, s62, 12
            s_lshl_b32 s46, s60, 4
            s_add_u32 s45, s45, s46
            s_add_u32 s45, s45, {WS_ZP}
            v_lshlrev_b32 v57, 12, v56
            v_lshl_add_u32 v57, v58, 10, v57
            s_mov_b32 exec_lo, 0x00010001
            s_mov_b32 exec_hi, 0x00010001""")
    for g in range(2):
        for half in range(2):
            p.I(f"buffer_store_dwordx4 {rng(GZ + 8*g + 4*half, 4)}, v57, s[28:31], s45 offen offset:{g*2048 + half*512} sc1")
    p.I("s_mov_b64 exec, -1")
    store_frags(p, OUT[0], 's61', 0, 0)
    gelu_tile(p, ACC(2, 1), 1, OUT[1], 140)
    store_frags(p, OUT[1], 's61', 1, 0)
    T.stamp(p, 5)
    p.I("""s_cmp_eq_u32 s3, 0
           s_cbranch_scc0 L_A_NORED""")
    reducer(p, cfg)
    p.I("s_branch L_A_DONE")
    p.L('L_A_NORED')
    p.I("s_waitcnt vmcnt(0)")
    T.stamp(p, 6)
    f1_flag(p, 'A')
    p.I("""s_cmp_eq_u32 s3, 1
           s_cbranch_scc0 L_A_DONE
           s_cmp_eq_u32 s2, 0
           s_cbranch_scc0 L_A_DONE""")
    p.I(f"""v_mul_u32_u24 v20, {FS}, v0
            s_mov_b32 s48, 0
        L_EP_RETRY:
            s_mov_b32 s44, {WS_F1}""")
    for k in range(16):
        p.I(f"""buffer_load_dwordx2 v[{64+2*k}:{65+2*k}], v20, s[28:31], s44 offen sc1
                s_add_u32 s44, s44, {64*FS}""")
    p.I("s_waitcnt vmcnt(0)\n v_mov_b32 v22, 0")
    for k in range(16):
        p.I(f"""v_xor_b32 v23, s42, v{64+2*k}
                v_or_b32 v22, v22, v23
                v_xor_b32 v23, s43, v{65+2*k}
                v_or_b32 v22, v22, v23""")
    p.I(f"""v_cmp_ne_u32 vcc, 0, v22
            s_add_u32 s48, s48, 1
            s_cmp_eq_u64 vcc, 0
            s_cbranch_scc1 L_EP_OK
            s_cmp_ge_u32 s48, {SPIN_MAX >> 5}
            s_cbranch_scc1 L_EP_OK
            s_sleep 8
            s_branch L_EP_RETRY
        L_EP_OK:""")
    p.I("""s_mov_b32 s44, 0""")
    write_flag(p, 's44')
    p.L('L_A_DONE')
    T.stamp(p, 7)
    dump_ts(p, cfg, T, 8)
    p.I("s_endpgm")

def helper_waves(p, cfg, T):
    p.I("s_sub_u32 s49, s3, 4")
    p.I("""s_cmp_lt_u32 s49, 2
           s_cbranch_scc0 L_H_NOTLOADER""")
    loader(p, cfg, T)
    p.I("s_branch L_H_B")
    p.L('L_H_NOTLOADER')
    p.I("s_barrier")
    p.I(f"""v_mov_b32 v12, {MISC}
            v_mov_b32 v9, 1""")
    epoch_tag(p)
    spin_lds_ge(p, 'L_H_F0', 'v12', 0, 2)
    p.I("""s_cmp_eq_u32 s49, 2
           s_cbranch_scc0 L_H_COL""")
    stat_rows(p, cfg)
    T.stamp(p, 1)
    p.I("s_branch L_H_B")
    p.L('L_H_COL')
    stat_cols(p, cfg)
    spin_lds_ge(p, 'L_H_ISS7', 'v12', L_GISS - MISC, 1)
    T.stamp(p, 1)
    p.L('L_H_B')
    phase2(p, cfg, T)

def stat_rows(p, cfg):
    p.I("""v_bfe_u32 v10, v0, 1, 3
           v_lshlrev_b32 v10, 4, v10
           v_lshl_add_u32 v10, v0, 7, v10""")
    for c in range(8):
        p.I(f"v_xor_b32 v11, {c << 4}, v10")
        p.I(f"ds_read_b128 {rng(16 + 4*c, 4)}, v11")
        p.I(f"ds_read_b128 {rng(48 + 4*c, 4)}, v11 offset:8192")
        if c == 5: p.I("s_waitcnt lgkmcnt(6)")
    p.I("s_waitcnt lgkmcnt(0)")
    lds_inc(p, 'v12', L_FREE - MISC)
    p.I("s_mov_b32 s46, 0xffff0000")
    for r in range(2):
        base = 16 + 32*r; a = 80 + 4*r
        for k in range(4): p.I(f"v_mov_b32 v{a+k}, 0")
    for d in range(32):
        for r in range(2):
            base = 16 + 32*r; a = 80 + 4*r; t = 88 + 2*r
            p.I(f"""v_lshlrev_b32 v{t}, 16, v{base+d}
                    v_and_b32 v{t+1}, s46, v{base+d}
                    v_add_f32 v{a}, v{a}, v{t}
                    v_add_f32 v{a+1}, v{a+1}, v{t+1}
                    v_fmac_f32 v{a+2}, v{t}, v{t}
                    v_fmac_f32 v{a+3}, v{t+1}, v{t+1}""")
    for r in range(2):
        a = 80 + 4*r; g = 92 + 4*r
        p.I(f"""v_add_f32 v{g}, v{a}, v{a+1}
                v_add_f32 v{g+1}, v{a+2}, v{a+3}
                v_mov_b32 v{g+2}, s42
                v_mov_b32 v{g+3}, s43""")
    p.I(f"""s_and_b32 s44, s2, 3
            s_cmp_lt_u32 s44, 2
            s_cbranch_scc0 L_SR_NOPUB
            s_lshl_b32 s44, s4, 3
            s_add_u32 s44, s44, s7
            s_lshl_b32 s44, s44, 11
            s_add_u32 s44, s44, {WS_RP}
            v_lshlrev_b32 v11, 4, v0
            buffer_store_dwordx4 v[92:95], v11, s[28:31], s44 offen sc1
            buffer_store_dwordx4 v[96:99], v11, s[28:31], s44 offen offset:1024 sc1
        L_SR_NOPUB:""")
    spin_lds_ge(p, 'L_SR_ISS', 'v12', L_ISS - MISC, 2)
    p.I(f"""s_mov_b32 s48, 0
            v_lshlrev_b32 v11, 4, v0
        L_SR_RETRY:
            s_lshl_b32 s44, s4, 14
            s_add_u32 s44, s44, {WS_RP}
            s_lshl_b32 s45, s5, 13
            s_add_u32 s45, s45, {WS_CP}""")
    for cc in range(8):
        p.I(f"""buffer_load_dwordx4 {rng(16 + 8*cc, 4)}, v11, s[28:31], s44 offen sc1
                buffer_load_dwordx4 {rng(20 + 8*cc, 4)}, v11, s[28:31], s44 offen offset:1024 sc1
                buffer_load_dwordx4 {rng(80 + 4*cc, 4)}, v11, s[28:31], s45 offen sc1
                s_add_u32 s44, s44, 2048
                s_add_u32 s45, s45, 1024""")
    lds_inc(p, 'v12', L_GISS - MISC)
    p.I("s_waitcnt vmcnt(0)")
    first = True
    for cc in range(8):
        for (r2, sg) in ((16 + 8*cc + 2, 's42'), (16 + 8*cc + 3, 's43'), (20 + 8*cc + 2, 's42'), (20 + 8*cc + 3, 's43'), (80 + 4*cc + 3, 's42')):
            if first:
                p.I(f"v_xor_b32 v10, {sg}, v{r2}"); first = False
            else:
                p.I(f"""v_xor_b32 v13, {sg}, v{r2}
                        v_or_b32 v10, v10, v13""")
    p.I(f"""v_cmp_ne_u32 vcc, 0, v10
            s_add_u32 s48, s48, 1
            s_cmp_eq_u64 vcc, 0
            s_cbranch_scc1 L_SR_OK
            s_cmp_ge_u32 s48, {SPIN_MAX >> 5}
            s_cbranch_scc1 L_SR_OK
            s_sleep 2
            s_branch L_SR_RETRY
        L_SR_OK:""")
    for cc in range(1, 8):
        for r in range(2):
            p.I(f"""v_add_f32 v{16+4*r}, v{16+4*r}, v{16+8*cc+4*r}
                    v_add_f32 v{17+4*r}, v{17+4*r}, v{17+8*cc+4*r}""")
        for k in range(3): p.I(f"v_add_f32 v{80+k}, v{80+k}, v{80+4*cc+k}")
    p.I("""s_mov_b32 s44, 0x3b000000
           s_mov_b32 s45, 0x3727c5ac""")
    for r in range(2):
        b = 16 + 4*r; o = 24 + 4*r
        p.I(f"""v_mul_f32 v{o}, s44, v{b}
                v_mul_f32 v13, s44, v{b+1}
                v_fma_f32 v13, -v{o}, v{o}, v13
                v_max_f32 v13, 0, v13
                v_add_f32 v13, s45, v13
                v_sqrt_f32 v{o+1}, v13
                v_rsq_f32 v{o+2}, v13
                v_mov_b32 v{o+3}, 0""")
    p.I(f"""v_lshlrev_b32 v10, 4, v0
            v_add_u32 v10, {L_ST}, v10
            ds_write_b128 v10, v[24:27]
            ds_write_b128 v10, v[28:31] offset:1024
            v_lshlrev_b32 v10, 2, v0
            v_add_u32 v10, {L_RSTD}, v10
            ds_write_b32 v10, v26
            ds_write_b32 v10, v30 offset:256
            v_lshrrev_b32 v10, 5, v0
            v_mul_u32_u24 v10, 384, v10
            v_and_b32 v11, 31, v0
            v_lshl_add_u32 v10, v11, 2, v10
            v_add_u32 v10, {L_CS}, v10
            ds_write_b32 v10, v80
            ds_write_b32 v10, v81 offset:128
            ds_write_b32 v10, v82 offset:256
            s_waitcnt lgkmcnt(0)""")
    lds_inc(p, 'v12', L_STAT - MISC)

def stat_cols(p, cfg):
    p.I("""v_lshrrev_b32 v13, 5, v0
           v_bfe_u32 v14, v0, 2, 2
           v_lshl_add_u32 v10, v13, 3, v14
           v_lshlrev_b32 v10, 7, v10
           v_lshrrev_b32 v14, 1, v14
           v_lshl_add_u32 v10, v14, 6, v10
           v_bfe_u32 v14, v0, 4, 1
           v_lshl_add_u32 v10, v14, 5, v10
           v_and_b32 v14, 3, v0
           v_lshl_add_u32 v10, v14, 3, v10
           v_add_u32 v10, 16384, v10
           v_xor_b32 v11, 64, v10""")
    for T_ in range(6):
        q_, half = T_ >> 1, T_ & 1
        for ks in range(4):
            d = 16 + 16*T_ + 4*ks; o = q_*8192 + ks*2048
            p.I(f"ds_read_b64_tr_b16 {rng(d,2)}, v{10+half} offset:{o}")
            p.I(f"ds_read_b64_tr_b16 {rng(d+2,2)}, v{10+half} offset:{o+512}")
        if T_ % 1 == 0 and T_ < 5: p.I("s_waitcnt lgkmcnt(7)")
    p.I("s_waitcnt lgkmcnt(0)")
    lds_inc(p, 'v12', L_FREE - MISC)
    p.I("s_mov_b32 s46, 0xffff0000")
    for T_ in range(6):
        p.I(f"v_mov_b32 v{112+2*T_}, 0\n v_mov_b32 v{113+2*T_}, 0")
    for d in range(16):
        for T_ in range(6):
            x = 16 + 16*T_ + d; t = 124 + 2*(T_ & 1)
            p.I(f"""v_lshlrev_b32 v{t}, 16, v{x}
                    v_and_b32 v{t+1}, s46, v{x}
                    v_add_f32 v{112+2*T_}, v{112+2*T_}, v{t}
                    v_add_f32 v{113+2*T_}, v{113+2*T_}, v{t+1}""")
    for T_ in range(6):
        p.I(f"v_add_f32 v{112+2*T_}, v{112+2*T_}, v{113+2*T_}")
        half_sum(p, 112 + 2*T_, 1)
    p.I(f"""v_cmp_gt_u32 vcc, 32, v0
            v_cndmask_b32 v16, v118, v112, vcc
            v_cndmask_b32 v17, v120, v114, vcc
            v_cndmask_b32 v18, v122, v116, vcc
            v_mov_b32 v19, s42
            s_cmp_lt_u32 s4, 8
            s_cbranch_scc0 L_SC_NOPUB
            s_lshl_b32 s44, s5, 3
            s_add_u32 s44, s44, s7
            s_lshl_b32 s44, s44, 10
            s_add_u32 s44, s44, {WS_CP}
            v_lshlrev_b32 v11, 4, v0
            buffer_store_dwordx4 v[16:19], v11, s[28:31], s44 offen sc1
        L_SC_NOPUB:""")


def lds_inc(p, vaddr, off=0):
    p.I(f"""s_mov_b64 exec, 1
            ds_add_u32 {vaddr}, v9 offset:{off}
            s_mov_b64 exec, -1""")

def loader(p, cfg, T):
    srd(p, 8, 64, 2048*512*2)
    srd(p, 12, 66, 512*1536*2)
    srd(p, 16, 72, 512*1376*2)
    p.I("""s_cmp_eq_u32 s6, 0
           s_cselect_b32 s20, s12, s16
           s_cselect_b32 s21, s13, s17
           s_cselect_b32 s22, s14, s18
           s_mov_b32 s23, 0x20000""")
    p.I(f"""v_lshrrev_b32 v10, 3, v0
            v_and_b32 v11, 7, v0
            v_lshrrev_b32 v13, 4, v0
            v_xor_b32 v14, v11, v13
            v_lshlrev_b32 v14, 4, v14
            v_lshl_add_u32 v2, v10, 10, v14
            v_xor_b32 v3, 64, v2
            v_bfe_u32 v13, v0, 4, 1
            v_lshlrev_b32 v13, 2, v13
            v_xor_b32 v14, v11, v13
            v_lshlrev_b32 v14, 4, v14
            v_mul_u32_u24 v4, 3072, v10
            v_add_u32 v4, v4, v14
            v_mul_u32_u24 v5, 2752, v10
            v_add_u32 v5, v5, v14
            s_cmp_eq_u32 s6, 0
            s_cselect_b64 vcc, -1, 0
            v_cndmask_b32 v6, v5, v4, vcc
            v_mov_b32 v12, {MISC}
            v_mov_b32 v9, 1""")
    p.I(f"""s_cmp_eq_u32 s6, 0
            s_cbranch_scc0 L_L_TB
            s_lshl_b32 s44, s5, 7
            s_add_u32 s52, s44, 1024
            s_add_u32 s53, s44, 2048
            s_mov_b32 s54, s44
            s_mov_b32 s55, {8*3072}
            s_mov_b32 s56, {64*3072}
            s_branch L_L_TD
        L_L_TB:
            s_sub_u32 s44, s5, 8
            s_lshl_b32 s52, s44, 7
            s_lshl_b32 s44, s44, 8
            s_add_u32 s53, s44, 1024
            s_add_u32 s54, s44, 1152
            s_mov_b32 s55, {8*2752}
            s_mov_b32 s56, {64*2752}
        L_L_TD:
            s_lshl_b32 s57, s4, 17
            s_mov_b32 s58, 0
            s_mov_b32 s59, 0""")
    half = 10
    def body(tag, pieces):
        p.L(f'L_L{tag}_LOOP')
        p.I(f"""s_add_u32 s60, s58, s7
                s_and_b32 s60, s60, 7
                s_cmp_lt_u32 s58, 3
                s_cbranch_scc1 L_L{tag}_GO
                s_lshl_b32 s44, s58, 2
                s_add_u32 s44, s44, {L_FREE - 12}
                v_mov_b32 v13, s44""")
        p.I("s_cmp_eq_u32 s58, 3\n s_cselect_b32 s47, 6, 4")
        spin_lds_ge(p, f'L_L{tag}_FR', 'v13', 0, 's47')
        p.L(f'L_L{tag}_GO')
        if cfg.tschunk and tag == 'X':
            p.I("""s_memrealtime s[46:47]
                   s_waitcnt lgkmcnt(0)
                   s_mov_b32 m0, s58
                   v_writelane_b32 v20, s46, m0""")
        p.I(f"""s_lshl_b32 s61, s60, 7
                s_add_u32 s61, s61, s57
                s_mul_i32 s62, s60, {64*3072}
                s_add_u32 s62, s62, s52
                s_mul_i32 s63, s60, s56
                s_add_u32 s63, s63, s53
                s_mul_i32 s48, s60, {64*2752}
                s_add_u32 s48, s48, s54""")
        if tag == 'W': p.I(f"s_add_u32 s62, s62, {4*8*3072}")
        for n, (lo, vr, S, ar, st) in enumerate(pieces):
            if n == half:
                p.I(f"""s_cmp_eq_u32 s58, 0
                        s_cbranch_scc1 L_L{tag}_NF
                        s_waitcnt vmcnt({half})
                        s_lshl_b32 s44, s58, 2
                        s_add_u32 s44, s44, {L_FULL - 4}
                        v_mov_b32 v14, s44""")
                lds_inc(p, 'v14')
                p.L(f'L_L{tag}_NF')
            p.I(f"""s_add_u32 m0, s59, {lo}
                    s_mov_b32 s47, {ar}
                    s_add_u32 {ar}, {ar}, {st}
                    buffer_load_dwordx4 v{vr}, {S}, s47 offen lds""") if False else None
            p.I(f"s_add_u32 m0, s59, {lo}")
            p.I(f"s_add_u32 {ar}, {ar}, {st}")
            p.I(f"buffer_load_dwordx4 v{vr}, {S}, {ar} offen lds")
        p.I(f"""s_cmp_lg_u32 s58, 0
                s_cbranch_scc1 L_L{tag}_NB
                s_barrier
            L_L{tag}_NB:
                s_add_u32 s59, s59, {SLOT}
                s_cmp_eq_u32 s59, {3*SLOT}
                s_cselect_b32 s59, 0, s59
                s_add_u32 s58, s58, 1
                s_cmp_lt_u32 s58, 8
                s_cbranch_scc1 L_L{tag}_LOOP""")
    px = [(pc*1024, 2 + (pc & 1), 's[8:11]', 's61', 8192) for pc in range(16)] + \
         [(16384 + g*1024, 4, 's[12:15]', 's62', 8*3072) for g in range(4)]
    pw = []
    for g in range(8):
        pw.append((16384 + 8192 + g*1024, 6, 's[20:23]', 's63', 's55'))
        pw.append((16384 + 16384 + g*1024, 5, 's[16:19]', 's48', 8*2752))
        if g % 2 == 1: pw.append((16384 + (4 + g//2)*1024, 4, 's[12:15]', 's62', 8*3072))
    p.I(f"""s_sub_u32 s57, s57, 8192
            s_sub_u32 s52, s52, {8*3072}
            s_sub_u32 s53, s53, s55
            s_sub_u32 s54, s54, {8*2752}
            s_cmp_eq_u32 s49, 0
            s_cbranch_scc0 L_LW_START""")
    body('X', px)
    if cfg.tschunk:
        p.I(f"""s_memrealtime s[46:47]
               s_waitcnt lgkmcnt(0)
               v_writelane_b32 v20, s46, 8
               s_lshl_b32 s44, s2, 8
               s_add_u32 s44, s44, {WS_DBG}
               v_lshlrev_b32 v21, 2, v0
               s_mov_b64 exec, 0xffff
               buffer_store_dword v20, v21, s[28:31], s44 offen
               s_mov_b64 exec, -1""")
    p.I("s_branch L_L_END")
    p.L('L_LW_START')
    body('W', pw)
    p.L('L_L_END')
    lds_inc(p, 'v12', L_ISS - MISC)
    p.I("s_waitcnt vmcnt(0)")
    lds_inc(p, 'v12', L_FULL - MISC + 28)
    spin_lds_ge(p, 'L_L_GI', 'v12', L_GISS - MISC, 1)
    T.stamp(p, 1)

AR = 16
RB = 64
KVC = 160
def ACC2(cg, rg): return 192 + 32*cg + 16*rg
NH = 22
NR = 12
NK = NH + 8

def tagcheck(p, acc, tmp, regs):
    first = True
    for r, sg in regs:
        if first: p.I(f"v_xor_b32 v{acc}, {sg}, v{r}"); first = False
        else: p.I(f"v_xor_b32 v{tmp}, {sg}, v{r}\n v_or_b32 v{acc}, v{acc}, v{tmp}")

def reducer(p, cfg, Rb=64):
    p.I(f"""s_and_b32 s61, s4, 3
            s_lshr_b32 s63, s4, 2
            s_lshl_b32 s62, s5, 2
            s_add_u32 s62, s62, s61
            v_lshrrev_b32 v20, 4, v0
            v_and_b32 v21, 15, v0
            v_lshlrev_b32 v22, 11, v20
            v_lshl_add_u32 v22, v21, 4, v22
            v_and_b32 v23, 31, v0
            v_lshlrev_b32 v23, 4, v23
            s_mov_b32 s48, 0
            s_lshl_b32 s47, s62, 12
            s_lshl_b32 s46, s63, 10
            s_add_u32 s47, s47, s46
            s_add_u32 s47, s47, {WS_ZP}
            buffer_load_dwordx4 v[24:27], v23, s[28:31], s47 offen offset:512 sc1
            s_waitcnt vmcnt(0)""")
    f1_flag(p, 'R')
    p.I(f"""s_branch L_RD_CHK
        L_RD_LIGHT:
            buffer_load_dwordx4 v[24:27], v23, s[28:31], s47 offen offset:512 sc1
            s_waitcnt vmcnt(0)
        L_RD_CHK:
            s_add_u32 s48, s48, 1
            v_xor_b32 v18, s42, v26
            v_xor_b32 v19, s43, v27
            v_or_b32 v18, v18, v19
            v_cmp_ne_u32 vcc, 0, v18
            s_cmp_eq_u64 vcc, 0
            s_cbranch_scc1 L_RD_RETRY
            s_cmp_ge_u32 s48, {SPIN_MAX >> 5}
            s_cbranch_scc1 L_RD_RETRY
            s_sleep {cfg.slp_red}
            s_branch L_RD_LIGHT
        L_RD_RETRY:
            s_lshl_b32 s44, s62, 16
            s_lshl_b32 s45, s63, 9
            s_add_u32 s44, s44, s45
            s_add_u32 s44, s44, {WS_KVP}
            buffer_load_dwordx4 v[24:27], v23, s[28:31], s47 offen sc1
            buffer_load_dwordx4 v[28:31], v23, s[28:31], s47 offen offset:512 sc1""")
    for u in range(8):
        p.I(f"""buffer_load_dwordx4 {rng(Rb+8*u,4)}, v22, s[28:31], s44 offen sc1
                buffer_load_dwordx4 {rng(Rb+4+8*u,4)}, v22, s[28:31], s44 offen offset:256 sc1
                s_add_u32 s44, s44, 8192""")
    p.I("s_waitcnt vmcnt(0)")
    regs = []
    for b in [Rb + 4*k for k in range(16)] + [24, 28]: regs += [(b+2, 's42'), (b+3, 's43')]
    tagcheck(p, 18, 19, regs)
    p.I(f"""v_cmp_ne_u32 vcc, 0, v18
            s_add_u32 s48, s48, 1
            s_cmp_eq_u64 vcc, 0
            s_cbranch_scc1 L_RD_OK
            s_cmp_ge_u32 s48, {SPIN_MAX >> 5}
            s_cbranch_scc1 L_RD_OK
            s_sleep 1
            s_branch L_RD_RETRY
        L_RD_OK:""")
    kv = (Rb, Rb+1, Rb+4, Rb+5)
    for u in range(1, 8):
        for r in kv: p.I(f"v_add_f32 v{r}, v{r}, v{r + 8*u}")
    for r in kv:
        half_sum(p, r, 1)
        p.I(f"""v_mov_b32 v1, v{r}
                v_permlane16_swap_b32 v{r}, v1
                v_add_f32 v{r}, v{r}, v1""")
    for r in (24, 25, 28, 29):
        for sh in (8, 4, 2, 1):
            p.I(f"v_add_f32_dpp v{r}, v{r}, v{r} row_ror:{sh} row_mask:0xf bank_mask:0xf")
        p.I(f"""v_mov_b32 v1, v{r}
                v_permlane16_swap_b32 v{r}, v1
                v_add_f32 v{r}, v{r}, v1""")
    p.I(f"""v_cmp_gt_u32 vcc, 16, v0
            v_cndmask_b32 v24, v24, v{kv[0]}, vcc
            v_cndmask_b32 v25, v25, v{kv[1]}, vcc
            v_cndmask_b32 v28, v28, v{kv[2]}, vcc
            v_cndmask_b32 v29, v29, v{kv[3]}, vcc
            v_cvt_pk_bf16_f32 v16, v24, v25
            v_cvt_pk_bf16_f32 v17, v28, v29
            v_mov_b32 v18, s42
            v_mov_b32 v19, s43
            v_subrev_u32 v24, 16, v0
            v_lshlrev_b32 v24, 2, v24
            v_add_u32 v24, 16, v24
            v_cndmask_b32 v24, v24, v0, vcc
            v_lshlrev_b32 v24, 4, v24
            s_lshl_b32 s44, s62, 11
            s_lshl_b32 s45, s63, 9
            s_add_u32 s44, s44, s45
            s_add_u32 s44, s44, {WS_KVF}
            s_mov_b64 exec, 0x3ffff
            buffer_store_dwordx4 v[16:19], v24, s[28:31], s44 offen sc1
            s_mov_b64 exec, -1""")

def phase2(p, cfg, T0):
    class _T:
        def stamp(self, p, idx):
            if not cfg.tsA: T0.stamp(p, idx)
    T = _T()
    def TA(idx):
        if cfg.tsA and not cfg.tsR: T0.stamp(p, idx)
    def TR(idx):
        if cfg.tsR: T0.stamp(p, idx)
    srd(p, 20, 76, 1376*512*2)
    srd(p, 24, 68, 512*512*2)
    srd(p, 8, 64, 2048*512*2)
    srd(p, 32, 80, 2048*512*2)
    srd(p, 36, 78, 1024)
    p.I(f"""s_and_b32 s50, s49, 1
            s_lshr_b32 s51, s49, 1
            v_lshrrev_b32 v10, 3, v0
            v_and_b32 v11, 7, v0
            v_bfe_u32 v13, v0, 4, 1
            v_lshlrev_b32 v13, 2, v13
            v_xor_b32 v14, v11, v13
            v_lshlrev_b32 v14, 4, v14
            v_lshl_add_u32 v3, v10, 10, v14
            s_lshl_b32 s44, s51, 10
            v_lshlrev_b32 v2, 4, v0
            v_add_u32 v2, s44, v2
            v_xor_b32 v15, 0x400, v2
            v_mov_b32 v12, {MISC}""")
    p.I(f"""v_lshrrev_b32 v10, 5, v0
            v_bfe_u32 v11, v0, 2, 2
            v_lshl_add_u32 v13, v10, 2, v11
            v_lshlrev_b32 v13, 7, v13
            v_lshrrev_b32 v14, 1, v11
            v_xor_b32 v14, s50, v14
            v_lshl_add_u32 v13, v14, 6, v13
            v_bfe_u32 v14, v0, 4, 1
            v_lshl_add_u32 v13, v14, 5, v13
            v_and_b32 v14, 3, v0
            v_lshl_add_u32 v13, v14, 3, v13""")
    p.I(f"""s_lshl_b32 s44, s49, 13
            s_add_u32 s52, s44, {MSEG}
            s_mul_i32 s44, s49, 10240
            s_add_u32 s53, s44, {2*SLOT}
            s_mov_b32 s54, s44
            s_add_u32 s55, s44, {SLOT}""")
    for k in range(4):
        p.I(f"""v_add_u32 v{4+2*k}, s{52+k}, v13
                v_xor_b32 v{5+2*k}, 64, v{4+2*k}""")
    cells = [(0, n) for n in range(4)] + [(1, n) for n in range(5)] + [(2, n) for n in range(5)] + [(3, n) for n in range(5)]
    Rcell = cells[:NR]
    Lcell = cells[NR:19] + cells[0:11]
    p.I(f"""s_mul_i32 s56, s49, {22*16*1024}
            s_lshl_b32 s44, s41, 7
            s_add_u32 s56, s56, s44
            s_lshl_b32 s57, s49, 17
            s_add_u32 s57, s57, s44""")
    p.I(f"""s_and_b32 s44, s40, 3
            s_lshl_b32 s44, s44, 1
            s_add_u32 s44, s44, s41
            s_and_b32 s82, s44, 7
            s_mul_i32 s83, s82, 22
            s_lshr_b32 s83, s83, 3""")
    if not cfg.rot2:
        p.I("s_mov_b32 s82, 0\n s_mov_b32 s83, 0")
    p.I("s_mov_b32 s61, s83\n s_mov_b32 s62, s82")
    def next_idx(reg, n):
        p.I(f"""s_add_u32 {reg}, {reg}, 1
                s_cmp_eq_u32 {reg}, {n}
                s_cselect_b32 {reg}, 0, {reg}""")
    def issue(kidx, cell):
        reg, n = cell
        if kidx < NH: S, sb, ir, nn = 's[20:23]', 's56', 's61', NH
        else: S, sb, ir, nn = 's[24:27]', 's57', 's62', 8
        p.I(f"""s_lshl_b32 s44, {ir}, 14
                s_add_u32 s44, s44, {sb}
                s_add_u32 m0, s{52+reg}, {n*2048}
                s_add_u32 s45, s44, 8192
                buffer_load_dwordx4 v3, {S}, s44 offen lds
                s_add_u32 m0, s{52+reg}, {n*2048 + 1024}""")
        next_idx(ir, nn)
        p.I(f"buffer_load_dwordx4 v3, {S}, s45 offen lds")
    def readB(cell, dst):
        reg, n = cell
        out = []
        for cg in range(2):
            a = 4 + 2*reg + cg
            out.append(f"ds_read_b64_tr_b16 {rng(dst+4*cg,2)}, v{a} offset:{n*2048}")
            out.append(f"ds_read_b64_tr_b16 {rng(dst+4*cg+2,2)}, v{a} offset:{n*2048+1024}")
        return out
    kcell = Rcell + Lcell
    for k in range(0, 4): issue(k, kcell[k])
    epoch_tag(p)
    spin_lds_ge(p, 'L_P2_W5', 'v12', L_FREE - MISC + 20, 4)
    for k in range(4, 9): issue(k, kcell[k])
    spin_lds_ge(p, 'L_P2_W6', 'v12', L_FREE - MISC + 24, 4)
    for k in range(9, 14): issue(k, kcell[k])
    spin_lds_ge(p, 'L_P2_W7', 'v12', L_FREE - MISC + 28, 4)
    for k in range(14, 19): issue(k, kcell[k])
    T.stamp(p, 2)
    p.I("s_waitcnt vmcnt(30)")
    for k in range(0, 4):
        for x in readB(kcell[k], RB + 8*k): p.I(x)
        if k == 2: p.I("s_waitcnt lgkmcnt(4)")
    p.I("s_waitcnt lgkmcnt(0)")
    for k in range(19, 23): issue(k, kcell[k])
    p.I("s_waitcnt vmcnt(28)")
    for k in range(4, 9):
        for x in readB(kcell[k], RB + 8*k): p.I(x)
        if k in (6,): p.I("s_waitcnt lgkmcnt(4)")
    p.I("s_waitcnt lgkmcnt(0)")
    for k in range(23, 28): issue(k, kcell[k])
    p.I("s_waitcnt vmcnt(32)")
    for k in range(9, 12):
        for x in readB(kcell[k], RB + 8*k): p.I(x)
    p.I("s_waitcnt lgkmcnt(0)")
    for k in range(28, 30): issue(k, kcell[k])
    T.stamp(p, 3)
    G0 = RB + 16
    def kv_loads():
        p.I(f"""v_lshrrev_b32 v14, 5, v0
                v_lshlrev_b32 v14, 9, v14
                v_and_b32 v13, 31, v0
                v_lshl_add_u32 v14, v13, 4, v14
                s_lshl_b32 s46, s49, 14
                s_add_u32 s46, s46, {WS_KVF}
                s_mov_b32 s47, s82""")
        for hd in range(8):
            p.I(f"""s_lshl_b32 s44, s47, 11
                    s_add_u32 s44, s44, s46
                    buffer_load_dwordx4 {rng(G0+8*hd,4)}, v14, s[28:31], s44 offen sc1
                    buffer_load_dwordx4 {rng(G0+8*hd+4,4)}, v14, s[28:31], s44 offen offset:1024 sc1""")
            next_idx('s47', 8)
    def kv_validate():
        p.I("s_mov_b32 s48, 0")
        p.L('L_KV_CHK')
        regs = []
        for hd in range(8):
            for b in (G0+8*hd, G0+8*hd+4): regs += [(b+2, 's42'), (b+3, 's43')]
        tagcheck(p, 13, 1, regs)
        p.I(f"""v_cmp_ne_u32 vcc, 0, v13
                s_and_b32 vcc_lo, vcc_lo, 0x0011ffff
                s_and_b32 vcc_hi, vcc_hi, 0x0011ffff
                s_add_u32 s48, s48, 1
                s_cmp_eq_u64 vcc, 0
                s_cbranch_scc1 L_KV_OK
                s_cmp_ge_u32 s48, {SPIN_MAX >> 5}
                s_cbranch_scc1 L_KV_OK
                s_sleep {cfg.slp_kv}""")
        kv_loads()
        p.I("""s_waitcnt vmcnt(0)
               s_branch L_KV_CHK
            L_KV_OK:""")
        for hd in range(8):
            p.I(f"""v_mov_b32 v{KVC+4*hd}, v{G0+8*hd}
                    v_mov_b32 v{KVC+4*hd+1}, v{G0+8*hd+1}
                    v_mov_b32 v{KVC+4*hd+2}, v{G0+8*hd+4}
                    v_mov_b32 v{KVC+4*hd+3}, v{G0+8*hd+5}""")
    for r in range(192, 256): p.I(f"v_mov_b32 v{r}, 0")
    p.I(f"""v_and_b32 v14, 31, v0
            s_lshl_b32 s44, s40, 5
            v_add_u32 v14, s44, v14
            v_mul_u32_u24 v14, {FS}, v14
            v_add_u32 v14, {WS_F1}, v14""")
    poll_flags(p, 'L_P2_F1', 'v14', 16, 64, sleep=cfg.slp_f1)
    T.stamp(p, 4); TA(1)
    p.I(f"""s_mul_i32 s58, s40, {HF_IB}
            s_add_u32 s58, s58, {WS_HF}
            s_mul_i32 s59, s49, 22
            s_mul_i32 s60, s40, {PQ_IB}
            s_lshl_b32 s44, s49, 14
            s_add_u32 s60, s60, s44
            s_add_u32 s60, s60, {WS_PQ}
            s_mov_b32 s61, s83
            s_mov_b32 s62, s82""")
    sc = 'sc1' if cfg.asc1 else ''
    def issueA(u):
        slot = AR + 8*(u % 6)
        if u < NH:
            p.I(f"""s_add_u32 s44, s59, s61
                    s_min_u32 s44, s44, 85
                    s_lshl_b32 s44, s44, 11
                    s_add_u32 s44, s44, s58""")
            next_idx('s61', NH)
        else:
            p.I(f"""s_lshl_b32 s44, s62, 11
                    s_add_u32 s44, s44, s60""")
            next_idx('s62', 8)
        p.I(f"""buffer_load_dwordx4 {rng(slot,4)}, v2, s[28:31], s44 offen {sc}
                buffer_load_dwordx4 {rng(slot+4,4)}, v15, s[28:31], s44 offen {sc}""")
    vm = []
    for u in range(6):
        issueA(u); vm += [('A', u)] * 2
    def wait_for(tag):
        cand = [i for i, t in enumerate(vm) if t == tag]
        if not cand: return
        n = len(vm) - 1 - max(cand)
        p.I(f"s_waitcnt vmcnt({n})")
        del vm[:max(cand) + 1]
    LB = [RB, RB + 8]
    def CBUF(n): return RB + 16 + 16*(n % 3)
    def OFR(hd, rg): return RB + 64 + 8*(hd & 1) + 4*rg
    XRES = RB + 80; BRES = RB + 88
    for u in range(NH):
        wait_for(('A', u))
        slot = AR + 8*(u % 6)
        if u < NR: B = RB + 8*u
        else:
            B = LB[u & 1]
            p.I("s_waitcnt lgkmcnt(0)")
        nxt = []
        if u + 1 >= NR: nxt = readB(kcell[u + 1], LB[(u + 1) & 1])
        m = 0
        for cg in range(2):
            for rg in range(2):
                a = ACC2(cg, rg)
                p.I(f"v_mfma_f32_32x32x16_bf16 {rng(a,16)}, {rng(B+4*cg,4)}, {rng(slot+4*rg,4)}, {rng(a,16)}")
                if m < len(nxt): p.I(nxt[m])
                m += 1
        if u + 6 < NK:
            issueA(u + 6); vm.extend([('A', u + 6)] * 2)
        if u in (2, 7, 13, 21): TA({2: 3, 7: 4, 13: 5, 21: 6}[u])
        if u == cfg.kv_issue:
            kv_loads(); vm.extend([('K', 0)] * 16)
        if u == NH - 1:
            wait_for(('K', 0))
            kv_validate()
        if u == 19:
            p.I(f"""v_and_b32 v10, 31, v0
                    s_lshl_b32 s44, s40, 6
                    s_lshl_b32 s45, s51, 5
                    s_add_u32 s44, s44, s45
                    v_add_u32 v10, s44, v10
                    v_lshlrev_b32 v1, 10, v10
                    s_lshl_b32 s44, s41, 7
                    s_lshl_b32 s45, s50, 6
                    s_add_u32 s63, s44, s45
                    v_lshrrev_b32 v13, 5, v0
                    v_lshl_add_u32 v12, v13, 4, v1
                    v_lshl_add_u32 v14, v13, 3, v1
                    v_lshlrev_b32 v13, 3, v13""") if False else None
    T.stamp(p, 5)
    p.I(f"""v_and_b32 v12, 31, v0
            s_lshl_b32 s44, s40, 6
            s_lshl_b32 s45, s51, 5
            s_add_u32 s44, s44, s45
            v_add_u32 v12, s44, v12
            v_lshlrev_b32 v12, 10, v12
            s_lshl_b32 s44, s41, 7
            s_lshl_b32 s45, s50, 6
            s_add_u32 s63, s44, s45
            v_lshrrev_b32 v13, 5, v0
            v_lshl_add_u32 v14, v13, 3, v12
            v_lshlrev_b32 v1, 3, v13""")
    for g in range(4):
        p.I(f"buffer_load_dwordx2 {rng(XRES+2*g,2)}, v14, s[8:11], s63 offen offset:{g*16}")
        p.I(f"buffer_load_dwordx2 {rng(BRES+2*g,2)}, v1, s[36:39], s63 offen offset:{g*16}")
        vm.extend([('R', 0)] * 2)
    p.I("v_lshl_add_u32 v12, v13, 4, v12")
    def stepA(n):
        hd, rg = n >> 1, n & 1
        u = NH + hd
        slot = AR + 8*(u % 6)
        if rg == 0: wait_for(('A', u))
        p.I(f"v_mfma_f32_32x32x16_bf16 {rng(CBUF(n),16)}, {rng(KVC+4*hd,4)}, {rng(slot+4*rg,4)}, 0")
        if rg == 1 and u + 6 < NK:
            issueA(u + 6); vm.extend([('A', u + 6)] * 2)
    def stepB(n):
        hd, rg = n >> 1, n & 1
        c = CBUF(n); o = OFR(hd, rg)
        p.I(f"""v_add_f32 v{c+8}, {fhex(1e-6)}, v{c+8}
                v_rcp_f32 v{c+8}, v{c+8}""")
        for k in range(8): p.I(f"v_mul_f32 v{c+k}, v{c+k}, v{c+8}")
        for k in range(4): p.I(f"v_cvt_pk_bf16_f32 v{o+k}, v{c+2*k}, v{c+2*k+1}")
    def stepC(hd):
        u = NH + hd
        B = LB[u & 1]
        p.I("s_waitcnt lgkmcnt(0)")
        nxt = readB(kcell[u + 1], LB[(u + 1) & 1]) if u + 1 < NK else []
        m = 0
        for rg in range(2):
            for cg in range(2):
                a = ACC2(cg, rg); o = OFR(hd, rg)
                p.I(f"v_mfma_f32_32x32x16_bf16 {rng(a,16)}, {rng(B+4*cg,4)}, {rng(o,4)}, {rng(a,16)}")
                if m < len(nxt): p.I(nxt[m])
                m += 1
    stepA(0); stepA(1)
    for n in range(16):
        stepB(n)
        if n + 2 < 16: stepA(n + 2)
        if n & 1: stepC(n >> 1)
    T.stamp(p, 6); TA(7)
    p.I("""v_lshlrev_b32 v13, 4, v0
           v_add_u32 v14, s55, v13
           v_add_u32 v1, s54, v13""")
    for k in (1, 2, 3):
        a = ACC2(k & 1, k >> 1)
        for g in range(4):
            if k < 3: p.I(f"ds_write_b128 v14, {rng(a+4*g,4)} offset:{(k-1)*4096 + g*1024}")
            else:     p.I(f"ds_write_b128 v1, {rng(a+4*g,4)} offset:{g*1024}")
    RD = 16
    for k in (1, 2, 3):
        p.I(f"""s_xor_b32 s44, s49, {k}
                s_mul_i32 s44, s44, 10240
                s_add_u32 s44, s44, {SLOT + (k-1)*4096 if k < 3 else 0}
                v_add_u32 v{4+k}, s44, v13""")
    p.I("""s_waitcnt lgkmcnt(0)
           s_barrier""")
    for k in (1, 2, 3):
        for g in range(4): p.I(f"ds_read_b128 {rng(RD+16*(k-1)+4*g,4)}, v{4+k} offset:{g*1024}")
    OWN = ACC2(0, 0)
    p.I("s_mov_b32 s46, 0xffff0000")
    wait_for(('R', 0))
    XB = RB + 16
    for g in range(4):
        for hlf in range(2):
            xr = XRES + 2*g + hlf; br = BRES + 2*g + hlf; r0 = XB + 4*g + 2*hlf
            p.I(f"""v_lshlrev_b32 v{r0}, 16, v{xr}
                    v_and_b32 v{r0+1}, s46, v{xr}
                    v_lshlrev_b32 v{RB}, 16, v{br}
                    v_and_b32 v{RB+1}, s46, v{br}
                    v_add_f32 v{r0}, v{r0}, v{RB}
                    v_add_f32 v{r0+1}, v{r0+1}, v{RB+1}
                    v_add_f32 v{OWN+4*g+2*hlf}, v{OWN+4*g+2*hlf}, v{r0}
                    v_add_f32 v{OWN+4*g+2*hlf+1}, v{OWN+4*g+2*hlf+1}, v{r0+1}""")
    p.I("s_waitcnt lgkmcnt(0)")
    for r in range(16):
        p.I(f"""v_add_f32 v{RD+r}, v{RD+r}, v{RD+16+r}
                v_add_f32 v{OWN+r}, v{OWN+r}, v{RD+32+r}""")
    for r in range(16): p.I(f"v_add_f32 v{OWN+r}, v{OWN+r}, v{RD+r}")
    for k in range(8): p.I(f"v_cvt_pk_bf16_f32 v{RB+k}, v{OWN+2*k}, v{OWN+2*k+1}")
    p.I(f"""v_permlane32_swap_b32 v{RB}, v{RB+2}
            v_permlane32_swap_b32 v{RB+1}, v{RB+3}
            v_permlane32_swap_b32 v{RB+4}, v{RB+6}
            v_permlane32_swap_b32 v{RB+5}, v{RB+7}
            buffer_store_dwordx4 {rng(RB,4)}, v12, s[32:35], s63 offen
            buffer_store_dwordx4 {rng(RB+4,4)}, v12, s[32:35], s63 offen offset:32""")
    T.stamp(p, 7)
    dump_ts(p, cfg, T0, 8)

if __name__ == '__main__':
    cfg = Cfg()
    out = f'cdna_kernels/{NAME}.s'
    for a in sys.argv[1:]:
        if a == 'ts': cfg.ts = True
        elif a.startswith('rot='): cfg.rot = a[4:]
        elif a.startswith('fullpt='): cfg.fullpt = int(a[7:])
        elif a.startswith('out='): out = a[4:]
        elif a == 'fullwait0': cfg.fullwait0 = True
        elif a == 'dbgstats': cfg.dbgstats = True
        elif a == 'tschunk': cfg.tschunk = True
        elif a == 'norot2': cfg.rot2 = False
        elif a == 'tsA': cfg.tsA = True
        elif a == 'tsR': cfg.tsR = True; cfg.tsA = True
        elif a.startswith('slp_') or a.startswith('kv_issue'): k, v = a.split('='); setattr(cfg, k, int(v))
        elif a == 'noasc1': cfg.asc1 = False
        elif a == 'tscyc': cfg.tscyc = True
        elif a == 'tsallcyc': cfg.tsallcyc = True
        elif a == 'dbgout': cfg.dbgout = True; cfg.ts = True
        elif a == 'nodot': cfg.nodot = True
    p = build(cfg)
    s = p.text()
    open(out, 'w').write(s)
    print('written', out, p.stats)
```

```python
import sys
sys.path.insert(0, 'dev')
from asmlib import Prog

NAME = 'parallel_sum__linear_attn_block__dense_activation_gelu__prompt'

FS = 32
WS_F1 = 0x1000
WS_FK = 0x9000
WS_FR = 0xD000
WS_RP = 0x140000
WS_CP = 0x180000
WS_KVF = 0x10000
WS_ZP = 0x20000
WS_KVP = 0x600000 + 0x400000
WS_PQ = 0x200000
WS_HF = 0x400000
WS_TS = 0xC00000
WS_DBG = 0xC40000
WS_SIZE = 0x1000000
HF_IB = 86 * 2048
PQ_IB = 32 * 2048
SLOT = 40960
MISC = 3 * SLOT
L_FULL = MISC
L_FREE = MISC + 64
L_ISS = MISC + 128
L_STAT = MISC + 132
L_GISS = MISC + 136
L_ST = MISC + 256
L_RSTD = MISC + 2304
L_CS = MISC + 2816
MSEG = MISC + 8192
LDS_SIZE = 163840

SPIN_MAX = 1 << 22

class Cfg:
    rot = 'i2j'
    ts = False
    fullpt = 20
    stop_after = None
    fullwait0 = False
    dbgstats = False
    tschunk = False
    tscyc = False
    tsallcyc = False
    dbgout = False
    rot2 = True
    tsA = False
    tsR = False
    kv_issue = 14
    slp_red = 4
    slp_kv = 8
    slp_f1 = 4
    asc1 = True
    nodot = False

def ts(p, cfg, idx, sreg=90):
    if not cfg.ts: return
    p.I(f"""
        s_memrealtime s[90:91]
        s_lshl_b32 s92, s2, 3
        s_add_u32 s92, s92, s3
        s_lshl_b32 s92, s92, 7
        s_add_u32 s92, s92, {WS_TS + idx*8}
        s_waitcnt lgkmcnt(0)
        v_mov_b32 v250, s90
        v_mov_b32 v251, s91
        v_mov_b32 v252, 0
    """) if False else None

class TS:
    def __init__(self, cfg): self.on = cfg.ts; self.cyc = cfg.tsallcyc
    def stamp(self, p, idx):
        if not self.on: return
        p.I(f"{'s_memtime' if self.cyc else 's_memrealtime'} s[{86+2*idx}:{87+2*idx}]")

def srd(p, d, lo, size):
    p.I(f"""s_mov_b32 s{d}, s{lo}
            s_and_b32 s{d+1}, s{lo+1}, 0xffff
            s_mov_b32 s{d+2}, {size}
            s_mov_b32 s{d+3}, 0x20000""")

def spin_lds_ge(p, name, vaddr, off, val, vt='v1', st='s44', cnt='s45'):
    p.I(f"""s_mov_b32 {cnt}, 0
        {name}_sp:
            ds_read_b32 {vt}, {vaddr} offset:{off}
            s_add_u32 {cnt}, {cnt}, 1
            s_waitcnt lgkmcnt(0)
            v_readfirstlane_b32 {st}, {vt}
            s_cmp_ge_u32 {cnt}, {SPIN_MAX}
            s_cbranch_scc1 {name}_ok
            s_cmp_ge_u32 {st}, {val}
            s_cbranch_scc0 {name}_sp
        {name}_ok:""")

def poll_flags(p, name, vaddr, vd, nl, sleep=1):
    mask = (1 << nl) - 1
    p.I(f"""s_mov_b32 s45, 0
        {name}_pl:
            buffer_load_dwordx2 v[{vd}:{vd+1}], {vaddr}, s[28:31], 0 offen sc1
            s_add_u32 s45, s45, 1
            s_waitcnt vmcnt(0)
            v_cmp_ne_u32 vcc, s42, v{vd}
            v_cmp_ne_u32 s[46:47], s43, v{vd+1}
            s_or_b64 vcc, vcc, s[46:47]""")
    if nl < 64:
        lo = mask & 0xffffffff; hi = mask >> 32
        p.I(f"""s_and_b32 vcc_lo, vcc_lo, {hex(lo)}
                s_and_b32 vcc_hi, vcc_hi, {hex(hi)}""")
    p.I(f"""s_cmp_eq_u64 vcc, 0
            s_cbranch_scc1 {name}_ok
            s_cmp_ge_u32 s45, {SPIN_MAX >> 4}
            s_cbranch_scc1 {name}_ok
            s_sleep {sleep}
            s_branch {name}_pl
        {name}_ok:""")

def write_flag(p, soff):
    p.I(f"""v_mov_b32 v60, s42
            v_mov_b32 v61, s43
            v_mov_b32 v62, 0
            s_mov_b64 exec, 1
            buffer_store_dwordx2 v[60:61], v62, s[28:31], {soff} offen sc1
            s_mov_b64 exec, -1""")

def build(cfg=Cfg()):
    p = Prog()
    T = TS(cfg)
    K = f'{NAME}_kernel'
    p.raw(open('cdna_kernels/%s.s.ref' % NAME).read().split('; Override launch')[0].rstrip())
    p.raw('; Override launch geometry by editing the next line (default: block=256,')
    p.raw(f'; @launch grid=(256,1,1) block=(512,1,1) lds={LDS_SIZE}')
    p.raw('.amdgcn_target "amdgcn-amd-amdhsa--gfx950"\n.text')
    p.raw(f'.globl {K}\n.p2align 8\n.type {K},@function')
    p.L(K)
    p.I(f"""
        s_cmp_ge_u32 s2, 256
        s_cbranch_scc1 L_END
        s_load_dwordx16 s[64:79], s[0:1], 0
        s_load_dwordx2 s[80:81], s[0:1], 64
        s_load_dwordx2 s[84:85], s[0:1], 80
    """)
    T.stamp(p, 0)
    p.I(f"""
        v_lshrrev_b32 v1, 6, v0
        v_and_b32 v0, 63, v0
        v_readfirstlane_b32 s3, v1
        s_and_b32 s44, s2, 7
        s_lshr_b32 s45, s2, 3
        s_lshr_b32 s46, s44, 2
        s_lshl_b32 s46, s46, 3
        s_and_b32 s47, s45, 7
        s_add_u32 s4, s46, s47
        s_lshr_b32 s46, s45, 3
        s_lshr_b32 s6, s46, 1
        s_and_b32 s47, s46, 1
        s_and_b32 s48, s44, 3
        s_lshl_b32 s48, s48, 1
        s_add_u32 s48, s48, s47
        s_lshl_b32 s47, s6, 3
        s_add_u32 s5, s48, s47
        s_lshl_b32 s40, s44, 2
        s_and_b32 s47, s45, 3
        s_add_u32 s40, s40, s47
        s_lshr_b32 s41, s45, 2
    """)
    if cfg.rot == 'i2j':
        p.I("s_lshl_b32 s7, s46, 1\n s_add_u32 s7, s7, s4\n s_and_b32 s47, s44, 1\n s_add_u32 s7, s7, s47\n s_and_b32 s7, s7, 7")
    elif cfg.rot == 'none':
        p.I("s_mov_b32 s7, 0")
    elif cfg.rot == 'i':
        p.I("s_and_b32 s7, s4, 7")
    elif cfg.rot == 'half':
        p.I("s_add_u32 s7, s46, s4\n s_and_b32 s7, s7, 3\n s_lshl_b32 s7, s7, 1")
    p.I("s_waitcnt lgkmcnt(0)")
    srd(p, 28, 84, WS_SIZE)
    p.I("""s_cmp_ge_u32 s3, 4
           s_cbranch_scc1 L_HELPER""")
    compute_waves(p, cfg, T)
    p.L('L_HELPER')
    helper_waves(p, cfg, T)
    p.L('L_END')
    p.I("s_endpgm")
    p.raw(f""".section .rodata,"a"
.p2align 6
.amdhsa_kernel {K}
  .amdhsa_next_free_vgpr 256
  .amdhsa_next_free_sgpr 102
  .amdhsa_accum_offset 256
  .amdhsa_group_segment_fixed_size 0
  .amdhsa_kernarg_size 88
  .amdhsa_user_sgpr_count 2
  .amdhsa_user_sgpr_kernarg_segment_ptr 1
  .amdhsa_system_sgpr_workgroup_id_x 1
.end_amdhsa_kernel""")
    return p

def dump_ts(p, cfg, T, n):
    if not cfg.ts: return
    if cfg.dbgout:
        p.I(f"""s_load_dwordx2 s[84:85], s[0:1], 72
                s_memrealtime s[46:47]
                s_waitcnt lgkmcnt(0)
                s_mov_b32 s28, s84
                s_and_b32 s29, s85, 0xffff
                s_mov_b32 s30, 256
                s_mov_b32 s31, 0x20000
                v_mov_b32 v6, 0
                s_mov_b64 exec, 1
                v_mov_b32 v2, s46
                buffer_atomic_umax v2, v6, s[28:31], 0 offen offset:4
                s_not_b32 s45, s86
                v_mov_b32 v2, s45
                buffer_atomic_umax v2, v6, s[28:31], 0 offen""")
        uid = len(p.items)
        p.I(f"""s_cmp_eq_u32 s2, 5
                s_cbranch_scc0 L_DB{uid}_A
                s_cmp_eq_u32 s3, 1
                s_cbranch_scc0 L_DB{uid}_B
                v_mov_b32 v2, s90
                v_mov_b32 v3, s92
                v_mov_b32 v4, s96
                v_mov_b32 v5, s98
                buffer_store_dwordx4 v[2:5], v6, s[28:31], 0 offen offset:8
                v_mov_b32 v2, s86
                buffer_store_dword v2, v6, s[28:31], 0 offen offset:56
            L_DB{uid}_B:
                s_cmp_eq_u32 s3, 4
                s_cbranch_scc0 L_DB{uid}_A
                v_mov_b32 v2, s94
                v_mov_b32 v3, s96
                v_mov_b32 v4, s98
                v_mov_b32 v5, s100
                buffer_store_dwordx4 v[2:5], v6, s[28:31], 0 offen offset:24
            L_DB{uid}_A:
                s_cmp_eq_u32 s2, 0
                s_cbranch_scc0 L_DB{uid}_C
                s_cmp_eq_u32 s3, 4
                s_cbranch_scc0 L_DB{uid}_C
                v_mov_b32 v2, s94
                v_mov_b32 v3, s96
                v_mov_b32 v4, s98
                v_mov_b32 v5, s100
                buffer_store_dwordx4 v[2:5], v6, s[28:31], 0 offen offset:40
                v_mov_b32 v2, s86
                buffer_store_dword v2, v6, s[28:31], 0 offen offset:60
            L_DB{uid}_C:
                s_mov_b64 exec, -1""")
        return
    p.I(f"""s_waitcnt lgkmcnt(0)
            s_lshl_b32 s44, s2, 3
            s_add_u32 s44, s44, s3
            s_lshl_b32 s44, s44, 6
            s_add_u32 s44, s44, {WS_TS}
            v_mov_b32 v6, 0""")
    for k in range(0, 8, 4):
        p.I(f"""v_mov_b32 v2, s{86+2*k}
                v_mov_b32 v3, s{88+2*k}
                v_mov_b32 v4, s{90+2*k}
                v_mov_b32 v5, s{92+2*k}
                s_mov_b64 exec, 1
                buffer_store_dwordx4 v[2:5], v6, s[28:31], s44 offen offset:{k*4}
                s_mov_b64 exec, -1""")

def epoch_tag(p):
    p.I("""s_load_dwordx2 s[42:43], s[84:85], 0
           s_waitcnt lgkmcnt(0)
           s_mul_i32 s44, s42, 0x9E3779B1
           s_mul_i32 s43, s43, 0x85EBCA6B
           s_add_u32 s43, s43, s42
           s_add_u32 s43, s43, 0xC2B2AE35
           s_add_u32 s42, s44, 0x7F4A7C15""")

VXA = [2, 3, 4, 5]; VWA = 6; VFL = 7; VFA = 8
XS = [10, 12]; XQ = [11, 13]; CS = [14, 15, 16]; VB1 = [17, 18]
def XF(b, rg): return 20 + 8*b + 4*rg
def WF(b, t): return 36 + 12*b + 4*t
def ACC(t, rg): return 160 + 32*t + 16*rg
def rng(a, n): return f"v[{a}:{a+n-1}]"

def compute_waves(p, cfg, T):
    p.I("""s_lshr_b32 s50, s3, 1
           s_and_b32 s51, s3, 1""")
    p.I(f"""s_cmp_lg_u32 s3, 0
            s_cbranch_scc1 L_C_NOINIT
            v_lshlrev_b32 v1, 2, v0
            v_add_u32 v1, {MISC}, v1
            v_cmp_eq_u32 vcc, 8, v0
            v_cndmask_b32 v2, 0, 2, vcc
            ds_write_b32 v1, v2
        L_C_NOINIT:""")
    epoch_tag(p)
    p.I("s_barrier")
    srd(p, 36, 74, 2752)
    p.I("""v_and_b32 v60, 31, v0
           v_lshrrev_b32 v61, 5, v0
           v_bfe_u32 v62, v0, 1, 3
           s_lshl_b32 s44, s50, 13
           v_lshlrev_b32 v63, 7, v60
           v_add_u32 v63, s44, v63""")
    for ks in range(4):
        p.I(f"""v_add_u32 v64, {2*ks}, v61
                v_xor_b32 v64, v64, v62
                v_lshlrev_b32 v64, 4, v64
                v_add_u32 v{VXA[ks]}, v63, v64""")
    p.I(f"""v_bfe_u32 v64, v0, 2, 2
            v_lshl_add_u32 v65, v61, 3, v64
            v_lshlrev_b32 v65, 7, v65
            v_lshrrev_b32 v66, 1, v64
            v_xor_b32 v66, s51, v66
            v_lshl_add_u32 v65, v66, 6, v65
            v_bfe_u32 v66, v0, 4, 1
            v_lshl_add_u32 v65, v66, 5, v65
            v_and_b32 v66, 3, v0
            v_lshl_add_u32 v65, v66, 3, v65
            v_add_u32 v{VWA}, 16384, v65
            v_mov_b32 v{VFA}, {MISC}
            v_mov_b32 v9, 1
            s_mov_b32 s52, 0x3f803f80""")
    for r in range(160, 256): p.I(f"v_mov_b32 v{r}, 0")
    p.I(f"""v_and_b32 v60, 31, v0
            v_lshlrev_b32 v60, 1, v60
            s_cmp_eq_u32 s6, 0
            s_cbranch_scc0 L_C_B1B
            s_lshl_b32 s53, s5, 1
            s_add_u32 s54, s53, s51
            s_mov_b32 s53, 64
            s_branch L_C_B1D
        L_C_B1B:
            s_sub_u32 s53, s5, 8
            s_lshl_b32 s53, s53, 2
            s_add_u32 s53, s53, 16
            s_add_u32 s53, s53, s51
            s_add_u32 s54, s53, 2
        L_C_B1D:
            s_lshl_b32 s55, s53, 6
            s_lshl_b32 s56, s54, 6
            buffer_load_ushort v{VB1[0]}, v60, s[36:39], s55 offen
            buffer_load_ushort v{VB1[1]}, v60, s[36:39], s56 offen""")
    T.stamp(p, 1)
    p.I("""s_cmp_eq_u32 s6, 0
           s_cbranch_scc0 L_TYPEB""")
    main_loop(p, cfg, T, 'A')
    T.stamp(p, 3)
    stats(p, cfg, 'A')
    T.stamp(p, 4)
    epilogue_A(p, cfg, T)
    p.L('L_TYPEB')
    main_loop(p, cfg, T, 'B')
    T.stamp(p, 3)
    stats(p, cfg, 'B')
    T.stamp(p, 4)
    epilogue_B(p, cfg, T)

def frag_reads(ks, b):
    def X(rg): return f"ds_read_b128 {rng(XF(b, rg), 4)}, v{VXA[ks]} offset:{rg*4096}"
    def W(t, h): return f"ds_read_b64_tr_b16 {rng(WF(b, t)+2*h, 2)}, v{VWA} offset:{t*8192 + ks*2048 + h*512}"
    return [X(0), W(0, 0), W(0, 1), X(1), W(1, 0), W(1, 1), W(2, 0), W(2, 1)]

def main_loop(p, cfg, T, ty):
    tr = {'A': [False, False, True], 'B': [True, True, True]}[ty]
    spin_lds_ge(p, f'L_{ty}_F0', f'v{VFA}', 0, 2)
    T.stamp(p, 2)
    p.I("s_waitcnt lgkmcnt(0)")
    for x in frag_reads(0, 0): p.I(x)
    p.I(f"""s_mov_b32 s57, 0
           s_mov_b32 s58, 0
           s_mov_b32 s48, {(-2*SLOT) & 0xffffffff}
           s_mov_b32 s49, {SLOT}""")
    p.L(f'L_{ty}_LOOP')
    q = [('F', 0, n) for n in range(8)]
    def wait(item):
        if item not in q: return
        k = q.index(item)
        p.I(f"s_waitcnt lgkmcnt({len(q) - 1 - k})")
        del q[:k + 1]
    needs = {0: 2, 1: 3, 2: 5, 3: 5, 4: 7, 5: 7}
    order = [(t, rg) for t in range(3) for rg in range(2)]
    for ks in range(4):
        b = ks & 1; nb = b ^ 1
        nks = (ks + 1) & 3
        rd = frag_reads(nks, nb)
        fill = {m: [] for m in range(6)}
        for n, x in enumerate(rd): fill[n // 2].append((x, ('F', nks, n)))
        pre = []
        if ks == 1:
            fill[4].append((f"s_lshl_b32 s59, s57, 2", None))
            fill[4].append((f"v_add_u32 v63, s59, v{VFA}", None))
            fill[5].append((f"ds_read_b32 v{VFL}, v63 offset:4", ('FL',)))
        if ks == 2:
            fill[4].append(("@waitFL", None))
            fill[4].append((f"v_readfirstlane_b32 s44, v{VFL}", None))
            fill[4].append((f"s_cmp_eq_u32 s58, 2", None))
            fill[4].append((f"s_cselect_b32 s59, s48, s49", None))
            fill[5].append(("@checkfull", None))
        if ks == 3:
            pre = [f"v_add_u32 v{VXA[0]}, s59, v{VXA[0]}", f"v_add_u32 v{VWA}, s59, v{VWA}"]
            fill[1].append((f"v_add_u32 v{VXA[1]}, s59, v{VXA[1]}", None))
            fill[2].append((f"v_add_u32 v{VXA[2]}, s59, v{VXA[2]}", None))
            fill[3].append((f"v_add_u32 v{VXA[3]}, s59, v{VXA[3]}", None))
            fill[4].append(("@free", None))
            fill[5].append(("s_add_u32 s58, s58, 1", None))
            fill[5].append(("s_cmp_eq_u32 s58, 3", None))
            fill[5].append(("s_cselect_b32 s58, 0, s58", None))
        for x in pre: p.I(x)
        for m, (t, rg) in enumerate(order):
            wait(('F', ks, needs[m]))
            a = ACC(t, rg)
            if tr[t]: p.I(f"v_mfma_f32_32x32x16_bf16 {rng(a,16)}, {rng(WF(b,t),4)}, {rng(XF(b,rg),4)}, {rng(a,16)}")
            else:     p.I(f"v_mfma_f32_32x32x16_bf16 {rng(a,16)}, {rng(XF(b,rg),4)}, {rng(WF(b,t),4)}, {rng(a,16)}")
            for x, item in fill[m]:
                if x == "@waitFL": wait(('FL',)); continue
                if x == "@checkfull":
                    p.I(f"""s_cmp_ge_u32 s44, 2
                            s_cbranch_scc1 L_{ty}_FOK
                            v_add_u32 v1, 4, v63""")
                    spin_lds_ge(p, f'L_{ty}_FS', 'v1', 0, 2, vt=f'v{VFL}')
                    p.L(f'L_{ty}_FOK')
                    if cfg.tschunk:
                        p.I(f"""{'s_memtime' if cfg.tscyc else 's_memrealtime'} s[46:47]
                               s_waitcnt lgkmcnt(0)
                               s_mov_b32 m0, s57
                               v_writelane_b32 v19, s46, m0""")
                    continue
                if x == "@free":
                    p.I(f"""s_mov_b64 exec, 1
                            ds_add_u32 v63, v9 offset:64
                            s_mov_b64 exec, -1""")
                    q.append(('FREE',))
                    continue
                p.I(x)
                if item is not None: q.append(item)
    p.C(f"queue at back-edge: {q}")
    p.I(f"""s_add_u32 s57, s57, 1
            s_cmp_lt_u32 s57, 8
            s_cbranch_scc1 L_{ty}_LOOP
            s_waitcnt lgkmcnt(0)""")
    main_loop.q_end = list(q)
    if cfg.tschunk:
        p.I(f"""s_lshl_b32 s44, s2, 8
               s_lshl_b32 s45, s3, 5
               s_add_u32 s44, s44, s45
               s_add_u32 s44, s44, {WS_DBG + 64}
               v_lshlrev_b32 v21, 2, v0
               s_mov_b64 exec, 0xff
               buffer_store_dword v19, v21, s[28:31], s44 offen
               s_mov_b64 exec, -1""")

def half_sum(p, r, t):
    p.I(f"""v_mov_b32 v{t}, v{r}
            v_permlane32_swap_b32 v{r}, v{t}
            v_add_f32 v{r}, v{r}, v{t}""")

MEAN = [60, 61]; STD = [62, 64]; RSTD = [66, 68]
ROWF = [72, 76]
COLF = [80, 84, 88]

def stats(p, cfg, ty):
    spin_lds_ge(p, f'L_{ty}_ST', f'v{VFA}', L_STAT - MISC, 1)
    p.I(f"""v_and_b32 v20, 31, v0
            s_lshl_b32 s44, s50, 10
            s_add_u32 s44, s44, {L_ST}
            v_lshl_add_u32 v21, v20, 4, s44
            s_lshl_b32 s45, s51, 7
            s_add_u32 s45, s45, {L_CS}
            v_lshl_add_u32 v22, v20, 2, s45
            ds_read_b128 v[24:27], v21
            ds_read_b128 v[28:31], v21 offset:512
            ds_read_b32 v{CS[0]}, v22
            ds_read_b32 v{CS[1]}, v22 offset:256
            ds_read_b32 v{CS[2]}, v22 offset:512
            s_mov_b32 s46, 0xffff0000
            v_cmp_gt_u32 vcc, 32, v0
            s_waitcnt lgkmcnt(0)""")
    for rg in range(2):
        m, sd, rs = MEAN[rg], STD[rg], RSTD[rg]
        f = ROWF[rg]; b = 24 + 4*rg
        p.I(f"""v_mov_b32 v{sd}, v{b+1}
                v_mov_b32 v{rs}, v{b+2}
                v_sub_f32 v32, 0, v{b}
                v_cvt_pk_bf16_f32 v{f}, v32, v32
                v_and_b32 v33, s46, v{f}
                v_sub_f32 v33, v32, v33
                v_cvt_pk_bf16_f32 v{f+1}, v33, v{sd}
                v_and_b32 v34, s46, v{f+1}
                v_sub_f32 v34, v{sd}, v34
                v_mov_b32 v35, 0
                v_cvt_pk_bf16_f32 v{f+2}, v34, v35
                v_cndmask_b32 v{f}, 0, v{f}, vcc
                v_cndmask_b32 v{f+1}, 0, v{f+1}, vcc
                v_cndmask_b32 v{f+2}, 0, v{f+2}, vcc
                v_mov_b32 v{f+3}, 0""")
    p.I("s_waitcnt vmcnt(0)")
    for t in range(3):
        f = COLF[t]; c = CS[t]
        b1 = None
        if ty == 'A' and t == 2: b1 = VB1[1]
        if ty == 'B' and t >= 1: b1 = VB1[t-1]
        p.I(f"""v_cvt_pk_bf16_f32 v24, v{c}, v{c}
                v_and_b32 v25, s46, v24
                v_sub_f32 v26, v{c}, v25
                v_cvt_pk_bf16_f32 v{f}, v25, v26""")
        if b1 is None:
            p.I(f"""v_lshrrev_b32 v{f+1}, 16, v25
                    v_mov_b32 v{f+2}, 0""")
        else:
            p.I(f"""v_lshrrev_b32 v27, 16, v25
                    v_lshl_or_b32 v{f+1}, v{b1}, 16, v27
                    v_mov_b32 v{f+2}, v{b1}""")
        p.I(f"v_mov_b32 v{f+3}, 0")
    tr = {'A': [False, False, True], 'B': [True, True, True]}[ty]
    for t in range(3):
        for rg in range(2):
            a = ACC(t, rg)
            if tr[t]: p.I(f"v_mfma_f32_32x32x16_bf16 {rng(a,16)}, {rng(COLF[t],4)}, {rng(ROWF[rg],4)}, {rng(a,16)}")
            else:     p.I(f"v_mfma_f32_32x32x16_bf16 {rng(a,16)}, {rng(ROWF[rg],4)}, {rng(COLF[t],4)}, {rng(a,16)}")

K1 = -2.0 * 1.4426950408889634 * 0.7978845608028654
K2 = K1 * 0.044715
import struct
def fhex(x): return '0x%08x' % struct.unpack('<I', struct.pack('<f', x))[0]

def gelu_tile(p, acc, rg, out, tmp):
    A1, A2, SD = GA1[rg], GA2[rg], STD[rg]
    for h in range(2):
        prs = [acc + 8*h + 2*k for k in range(4)]
        q = [tmp + 2*k for k in range(4)]; e = [tmp + 8 + 2*k for k in range(4)]
        for k in range(4): p.I(f"v_pk_mul_f32 v[{q[k]}:{q[k]+1}], v[{prs[k]}:{prs[k]+1}], v[{prs[k]}:{prs[k]+1}]")
        for k in range(4): p.I(f"v_pk_fma_f32 v[{q[k]}:{q[k]+1}], v[{q[k]}:{q[k]+1}], v[{A2}:{A2+1}], v[{A1}:{A1+1}] op_sel_hi:[1,0,0]")
        for k in range(4): p.I(f"v_pk_mul_f32 v[{q[k]}:{q[k]+1}], v[{q[k]}:{q[k]+1}], v[{prs[k]}:{prs[k]+1}]")
        for k in range(4):
            p.I(f"v_exp_f32 v{e[k]}, v{q[k]}")
            p.I(f"v_exp_f32 v{e[k]+1}, v{q[k]+1}")
        for k in range(4): p.I(f"v_pk_fma_f32 v[{e[k]}:{e[k]+1}], v[{e[k]}:{e[k]+1}], v[{SD}:{SD+1}], v[{SD}:{SD+1}] op_sel_hi:[1,0,0]")
        for k in range(4):
            p.I(f"v_rcp_f32 v{e[k]}, v{e[k]}")
            p.I(f"v_rcp_f32 v{e[k]+1}, v{e[k]+1}")
        for k in range(4): p.I(f"v_pk_mul_f32 v[{e[k]}:{e[k]+1}], v[{e[k]}:{e[k]+1}], v[{prs[k]}:{prs[k]+1}]")
        for k in range(4): p.I(f"v_cvt_pk_bf16_f32 v{out+4*h+k}, v{e[k]}, v{e[k]+1}")

GA1 = [92, 94]; GA2 = [96, 98]; QA = [100, 102]
LOG2E = 1.4426950408889634

def lane_consts(p):
    p.I(f"""s_mov_b32 s44, {fhex(K1)}
            s_mov_b32 s45, {fhex(K2)}
            s_mov_b32 s46, {fhex(LOG2E)}""")
    for rg in range(2):
        rs = RSTD[rg]
        p.I(f"""v_mul_f32 v{GA1[rg]}, s44, v{rs}
                v_mul_f32 v24, v{rs}, v{rs}
                v_mul_f32 v24, v24, v{rs}
                v_mul_f32 v{GA2[rg]}, s45, v24
                v_mul_f32 v{QA[rg]}, s46, v{rs}""")

def phi_tile_T(p, acc, rg, out, tmp):
    rs, qa = RSTD[rg], QA[rg]
    for h in range(2):
        prs = [acc + 8*h + 2*k for k in range(4)]
        t = [tmp + 2*k for k in range(4)]; y = [tmp + 8 + 2*k for k in range(4)]
        for k in range(4): p.I(f"v_pk_mul_f32 v[{t[k]}:{t[k]+1}], v[{prs[k]}:{prs[k]+1}], v[{qa}:{qa+1}] op_sel_hi:[1,0]")
        for k in range(4): p.I(f"v_pk_fma_f32 v[{y[k]}:{y[k]+1}], v[{prs[k]}:{prs[k]+1}], v[{rs}:{rs+1}], v[104:105] op_sel_hi:[1,0,0]")
        for k in range(4):
            p.I(f"v_exp_f32_e64 v{t[k]}, v{t[k]} clamp")
            p.I(f"v_exp_f32_e64 v{t[k]+1}, v{t[k]+1} clamp")
        for k in range(4):
            p.I(f"v_max_f32 v{y[k]}, v{y[k]}, v104")
            p.I(f"v_max_f32 v{y[k]+1}, v{y[k]+1}, v104")
        for k in range(4): p.I(f"v_pk_add_f32 v[{t[k]}:{t[k]+1}], v[{t[k]}:{t[k]+1}], v[{y[k]}:{y[k]+1}]")
        for k in range(4): p.I(f"v_cvt_pk_bf16_f32 v{out+4*h+k}, v{t[k]}, v{t[k]+1}")

def store_frags(p, out, sbase, rg, nstores):
    for u in range(2):
        p.I(f"buffer_store_dwordx4 {rng(out+4*u,4)}, v105, s[28:31], {sbase} offen offset:{u*2048 + rg*1024} sc1")
    return nstores + 2

def h_base(p, sreg, tile_sreg):
    p.I(f"""s_mul_i32 {sreg}, s60, {HF_IB}
            s_lshl_b32 s44, {tile_sreg}, 12
            s_add_u32 {sreg}, {sreg}, s44
            s_add_u32 {sreg}, {sreg}, {WS_HF}""")

def f1_flag(p, name):
    p.I(f"""s_lshl_b32 s44, s60, 5
            s_lshl_b32 s45, s5, 1
            s_add_u32 s44, s44, s45
            s_add_u32 s44, s44, s51
            s_mul_i32 s44, s44, {FS}
            s_add_u32 s44, s44, {WS_F1}""")
    write_flag(p, 's44')

def epi_common(p):
    lane_consts(p)
    p.I(f"""v_mov_b32 v104, {fhex(1e-6)}
            v_lshlrev_b32 v105, 4, v0
            s_lshl_b32 s60, s4, 1
            s_add_u32 s60, s60, s50""")

def epilogue_B(p, cfg, T):
    epi_common(p)
    OUT = [[108, 116], [124, 132]]
    p.I(f"""s_sub_u32 s61, s5, 8
            s_lshl_b32 s61, s61, 2
            s_lshl_b32 s44, s51, 1
            s_add_u32 s61, s61, s44
            s_lshl_b32 s61, s61, 11
            s_mul_i32 s44, s60, {PQ_IB}
            s_add_u32 s61, s61, s44
            s_add_u32 s61, s61, {WS_PQ}""")
    for rg in range(2):
        phi_tile_T(p, ACC(0, rg), rg, OUT[0][rg], 140)
        store_frags(p, OUT[0][rg], 's61', rg, 0)
    for t in (1, 2):
        tile = 's53' if t == 1 else 's54'
        p.I(f"""s_cmp_lt_u32 {tile}, 43
                s_cbranch_scc0 L_B_SKIP{t}""")
        h_base(p, 's61', tile)
        for rg in range(2):
            o = OUT[t & 1][rg]
            gelu_tile(p, ACC(t, rg), rg, o, 140)
            store_frags(p, o, 's61', rg, 0)
        p.L(f'L_B_SKIP{t}')
    T.stamp(p, 5)
    p.I("s_waitcnt vmcnt(0)")
    T.stamp(p, 6)
    f1_flag(p, 'B')
    T.stamp(p, 7)
    dump_ts(p, cfg, T, 8)
    p.I("s_endpgm")

def epilogue_A(p, cfg, T):
    epi_common(p)
    p.I(f"""s_lshl_b32 s44, s50, 8
            s_add_u32 s44, s44, {L_RSTD}
            v_lshrrev_b32 v22, 5, v0
            v_lshl_add_u32 v22, v22, 4, s44""")
    RB = [108, 124]
    for rg in range(2):
        for g in range(4):
            p.I(f"ds_read_b128 {rng(RB[rg]+4*g,4)}, v22 offset:{rg*128 + g*32}")
    p.I(f"""s_mov_b32 s44, {fhex(LOG2E)}
            v_mov_b32 v106, s44
            s_waitcnt lgkmcnt(0)""")
    KP = [20, 28]; VP = [36, 44]
    tmp = 140
    for rg in range(2):
        a = ACC(0, rg); rb = RB[rg]
        for h in range(2):
            prs = [a + 8*h + 2*k for k in range(4)]; rr = [rb + 8*h + 2*k for k in range(4)]
            y = [tmp + 2*k for k in range(4)]; t = [tmp + 8 + 2*k for k in range(4)]
            for k in range(4): p.I(f"v_pk_mul_f32 v[{y[k]}:{y[k]+1}], v[{prs[k]}:{prs[k]+1}], v[{rr[k]}:{rr[k]+1}]")
            for k in range(4): p.I(f"v_pk_mul_f32 v[{t[k]}:{t[k]+1}], v[{y[k]}:{y[k]+1}], v[106:107] op_sel_hi:[1,0]")
            for k in range(4):
                p.I(f"v_exp_f32_e64 v{t[k]}, v{t[k]} clamp")
                p.I(f"v_exp_f32_e64 v{t[k]+1}, v{t[k]+1} clamp")
            for k in range(4): p.I(f"v_pk_add_f32 v[{y[k]}:{y[k]+1}], v[{y[k]}:{y[k]+1}], v[104:105] op_sel_hi:[1,0]")
            for k in range(4):
                p.I(f"v_max_f32 v{y[k]}, v{y[k]}, v104")
                p.I(f"v_max_f32 v{y[k]+1}, v{y[k]+1}, v104")
            for k in range(4): p.I(f"v_pk_add_f32 v[{t[k]}:{t[k]+1}], v[{t[k]}:{t[k]+1}], v[{y[k]}:{y[k]+1}]")
            for k in range(4): p.I(f"v_cvt_pk_bf16_f32 v{KP[rg]+4*h+k}, v{t[k]}, v{t[k]+1}")
        a = ACC(1, rg)
        for k in range(8):
            p.I(f"v_pk_mul_f32 v[{tmp+2*(k%4)}:{tmp+2*(k%4)+1}], v[{a+2*k}:{a+2*k+1}], v[{rb+2*k}:{rb+2*k+1}]")
            p.I(f"v_cvt_pk_bf16_f32 v{VP[rg]+k}, v{tmp+2*(k%4)}, v{tmp+2*(k%4)+1}")
    for r in range(52, 56): p.I(f"v_mov_b32 v{r}, s52")
    KV = ACC(0, 0); ZZ = ACC(0, 1)
    first = True
    for rg in range(2):
        for t in range(2):
            c1 = '0' if first else rng(KV, 16); c2 = '0' if first else rng(ZZ, 16)
            p.I(f"v_mfma_f32_32x32x16_bf16 {rng(KV,16)}, {rng(KP[rg]+4*t,4)}, {rng(VP[rg]+4*t,4)}, {c1}")
            p.I(f"v_mfma_f32_32x32x16_bf16 {rng(ZZ,16)}, {rng(KP[rg]+4*t,4)}, v[52:55], {c2}")
            first = False
    h_base(p, 's61', 's54')
    OUT = [108, 116]
    gelu_tile(p, ACC(2, 0), 0, OUT[0], 140)
    p.I("""v_and_b32 v56, 16, v0
           v_cmp_ne_u32 vcc, 0, v56""")
    GK = 124; GZ = 36
    GZ = 140
    for g in range(2):
        for half in range(2):
            a = GK + 8*g + 4*half; z = GZ + 8*g + 4*half
            for k in range(2):
                i_ = 2*half + k
                p.I(f"v_cndmask_b32 v{a+k}, v{KV+4*g+i_}, v{KV+8+4*g+i_}, vcc")
                p.I(f"v_cndmask_b32 v{z+k}, v{ZZ+4*g+i_}, v{ZZ+8+4*g+i_}, vcc")
            p.I(f"""v_mov_b32 v{a+2}, s42
                    v_mov_b32 v{a+3}, s43
                    v_mov_b32 v{z+2}, s42
                    v_mov_b32 v{z+3}, s43""")
    p.I(f"""s_lshl_b32 s62, s5, 2
            s_lshl_b32 s44, s51, 1
            s_add_u32 s62, s62, s44
            s_lshl_b32 s44, s62, 16
            s_lshl_b32 s45, s60, 11
            s_add_u32 s44, s44, s45
            s_add_u32 s44, s44, {WS_KVP}
            v_bfe_u32 v56, v0, 4, 1
            v_lshlrev_b32 v57, 16, v56
            v_lshrrev_b32 v58, 5, v0
            v_lshl_add_u32 v57, v58, 9, v57
            v_and_b32 v59, 15, v0
            v_lshl_add_u32 v57, v59, 4, v57""")
    for g in range(2):
        for half in range(2):
            p.I(f"buffer_store_dwordx4 {rng(GK + 8*g + 4*half, 4)}, v57, s[28:31], s44 offen offset:{g*1024 + half*256} sc1")
    p.I(f"""s_lshl_b32 s45, s62, 12
            s_lshl_b32 s46, s60, 4
            s_add_u32 s45, s45, s46
            s_add_u32 s45, s45, {WS_ZP}
            v_lshlrev_b32 v57, 12, v56
            v_lshl_add_u32 v57, v58, 10, v57
            s_mov_b32 exec_lo, 0x00010001
            s_mov_b32 exec_hi, 0x00010001""")
    for g in range(2):
        for half in range(2):
            p.I(f"buffer_store_dwordx4 {rng(GZ + 8*g + 4*half, 4)}, v57, s[28:31], s45 offen offset:{g*2048 + half*512} sc1")
    p.I("s_mov_b64 exec, -1")
    store_frags(p, OUT[0], 's61', 0, 0)
    gelu_tile(p, ACC(2, 1), 1, OUT[1], 140)
    store_frags(p, OUT[1], 's61', 1, 0)
    T.stamp(p, 5)
    p.I("""s_cmp_eq_u32 s3, 0
           s_cbranch_scc0 L_A_NORED""")
    reducer(p, cfg)
    p.I("s_branch L_A_DONE")
    p.L('L_A_NORED')
    p.I("s_waitcnt vmcnt(0)")
    T.stamp(p, 6)
    f1_flag(p, 'A')
    p.I("""s_cmp_eq_u32 s3, 1
           s_cbranch_scc0 L_A_DONE
           s_cmp_eq_u32 s2, 0
           s_cbranch_scc0 L_A_DONE""")
    p.I(f"""v_mul_u32_u24 v20, {FS}, v0
            s_mov_b32 s48, 0
        L_EP_RETRY:
            s_mov_b32 s44, {WS_F1}""")
    for k in range(16):
        p.I(f"""buffer_load_dwordx2 v[{64+2*k}:{65+2*k}], v20, s[28:31], s44 offen sc1
                s_add_u32 s44, s44, {64*FS}""")
    p.I("s_waitcnt vmcnt(0)\n v_mov_b32 v22, 0")
    for k in range(16):
        p.I(f"""v_xor_b32 v23, s42, v{64+2*k}
                v_or_b32 v22, v22, v23
                v_xor_b32 v23, s43, v{65+2*k}
                v_or_b32 v22, v22, v23""")
    p.I(f"""v_cmp_ne_u32 vcc, 0, v22
            s_add_u32 s48, s48, 1
            s_cmp_eq_u64 vcc, 0
            s_cbranch_scc1 L_EP_OK
            s_cmp_ge_u32 s48, {SPIN_MAX >> 5}
            s_cbranch_scc1 L_EP_OK
            s_sleep 8
            s_branch L_EP_RETRY
        L_EP_OK:""")
    p.I("""s_mov_b32 s44, 0""")
    write_flag(p, 's44')
    p.L('L_A_DONE')
    T.stamp(p, 7)
    dump_ts(p, cfg, T, 8)
    p.I("s_endpgm")

def helper_waves(p, cfg, T):
    p.I("s_sub_u32 s49, s3, 4")
    p.I("""s_cmp_lt_u32 s49, 2
           s_cbranch_scc0 L_H_NOTLOADER""")
    loader(p, cfg, T)
    p.I("s_branch L_H_B")
    p.L('L_H_NOTLOADER')
    p.I("s_barrier")
    p.I(f"""v_mov_b32 v12, {MISC}
            v_mov_b32 v9, 1""")
    epoch_tag(p)
    spin_lds_ge(p, 'L_H_F0', 'v12', 0, 2)
    p.I("""s_cmp_eq_u32 s49, 2
           s_cbranch_scc0 L_H_COL""")
    stat_rows(p, cfg)
    T.stamp(p, 1)
    p.I("s_branch L_H_B")
    p.L('L_H_COL')
    stat_cols(p, cfg)
    spin_lds_ge(p, 'L_H_ISS7', 'v12', L_GISS - MISC, 1)
    T.stamp(p, 1)
    p.L('L_H_B')
    phase2(p, cfg, T)

def stat_rows(p, cfg):
    p.I("""v_bfe_u32 v10, v0, 1, 3
           v_lshlrev_b32 v10, 4, v10
           v_lshl_add_u32 v10, v0, 7, v10""")
    for c in range(8):
        p.I(f"v_xor_b32 v11, {c << 4}, v10")
        p.I(f"ds_read_b128 {rng(16 + 4*c, 4)}, v11")
        p.I(f"ds_read_b128 {rng(48 + 4*c, 4)}, v11 offset:8192")
        if c == 5: p.I("s_waitcnt lgkmcnt(6)")
    p.I("s_waitcnt lgkmcnt(0)")
    lds_inc(p, 'v12', L_FREE - MISC)
    p.I("s_mov_b32 s46, 0xffff0000")
    for r in range(2):
        base = 16 + 32*r; a = 80 + 4*r
        for k in range(4): p.I(f"v_mov_b32 v{a+k}, 0")
    for d in range(32):
        for r in range(2):
            base = 16 + 32*r; a = 80 + 4*r; t = 88 + 2*r
            p.I(f"""v_lshlrev_b32 v{t}, 16, v{base+d}
                    v_and_b32 v{t+1}, s46, v{base+d}
                    v_add_f32 v{a}, v{a}, v{t}
                    v_add_f32 v{a+1}, v{a+1}, v{t+1}
                    v_fmac_f32 v{a+2}, v{t}, v{t}
                    v_fmac_f32 v{a+3}, v{t+1}, v{t+1}""")
    for r in range(2):
        a = 80 + 4*r; g = 92 + 4*r
        p.I(f"""v_add_f32 v{g}, v{a}, v{a+1}
                v_add_f32 v{g+1}, v{a+2}, v{a+3}
                v_mov_b32 v{g+2}, s42
                v_mov_b32 v{g+3}, s43""")
    p.I(f"""s_and_b32 s44, s2, 3
            s_cmp_lt_u32 s44, 2
            s_cbranch_scc0 L_SR_NOPUB
            s_lshl_b32 s44, s4, 3
            s_add_u32 s44, s44, s7
            s_lshl_b32 s44, s44, 11
            s_add_u32 s44, s44, {WS_RP}
            v_lshlrev_b32 v11, 4, v0
            buffer_store_dwordx4 v[92:95], v11, s[28:31], s44 offen sc1
            buffer_store_dwordx4 v[96:99], v11, s[28:31], s44 offen offset:1024 sc1
        L_SR_NOPUB:""")
    spin_lds_ge(p, 'L_SR_ISS', 'v12', L_ISS - MISC, 2)
    p.I(f"""s_mov_b32 s48, 0
            v_lshlrev_b32 v11, 4, v0
        L_SR_RETRY:
            s_lshl_b32 s44, s4, 14
            s_add_u32 s44, s44, {WS_RP}
            s_lshl_b32 s45, s5, 13
            s_add_u32 s45, s45, {WS_CP}""")
    for cc in range(8):
        p.I(f"""buffer_load_dwordx4 {rng(16 + 8*cc, 4)}, v11, s[28:31], s44 offen sc1
                buffer_load_dwordx4 {rng(20 + 8*cc, 4)}, v11, s[28:31], s44 offen offset:1024 sc1
                buffer_load_dwordx4 {rng(80 + 4*cc, 4)}, v11, s[28:31], s45 offen sc1
                s_add_u32 s44, s44, 2048
                s_add_u32 s45, s45, 1024""")
    lds_inc(p, 'v12', L_GISS - MISC)
    p.I("s_waitcnt vmcnt(0)")
    first = True
    for cc in range(8):
        for (r2, sg) in ((16 + 8*cc + 2, 's42'), (16 + 8*cc + 3, 's43'), (20 + 8*cc + 2, 's42'), (20 + 8*cc + 3, 's43'), (80 + 4*cc + 3, 's42')):
            if first:
                p.I(f"v_xor_b32 v10, {sg}, v{r2}"); first = False
            else:
                p.I(f"""v_xor_b32 v13, {sg}, v{r2}
                        v_or_b32 v10, v10, v13""")
    p.I(f"""v_cmp_ne_u32 vcc, 0, v10
            s_add_u32 s48, s48, 1
            s_cmp_eq_u64 vcc, 0
            s_cbranch_scc1 L_SR_OK
            s_cmp_ge_u32 s48, {SPIN_MAX >> 5}
            s_cbranch_scc1 L_SR_OK
            s_sleep 2
            s_branch L_SR_RETRY
        L_SR_OK:""")
    for cc in range(1, 8):
        for r in range(2):
            p.I(f"""v_add_f32 v{16+4*r}, v{16+4*r}, v{16+8*cc+4*r}
                    v_add_f32 v{17+4*r}, v{17+4*r}, v{17+8*cc+4*r}""")
        for k in range(3): p.I(f"v_add_f32 v{80+k}, v{80+k}, v{80+4*cc+k}")
    p.I("""s_mov_b32 s44, 0x3b000000
           s_mov_b32 s45, 0x3727c5ac""")
    for r in range(2):
        b = 16 + 4*r; o = 24 + 4*r
        p.I(f"""v_mul_f32 v{o}, s44, v{b}
                v_mul_f32 v13, s44, v{b+1}
                v_fma_f32 v13, -v{o}, v{o}, v13
                v_max_f32 v13, 0, v13
                v_add_f32 v13, s45, v13
                v_sqrt_f32 v{o+1}, v13
                v_rsq_f32 v{o+2}, v13
                v_mov_b32 v{o+3}, 0""")
    p.I(f"""v_lshlrev_b32 v10, 4, v0
            v_add_u32 v10, {L_ST}, v10
            ds_write_b128 v10, v[24:27]
            ds_write_b128 v10, v[28:31] offset:1024
            v_lshlrev_b32 v10, 2, v0
            v_add_u32 v10, {L_RSTD}, v10
            ds_write_b32 v10, v26
            ds_write_b32 v10, v30 offset:256
            v_lshrrev_b32 v10, 5, v0
            v_mul_u32_u24 v10, 384, v10
            v_and_b32 v11, 31, v0
            v_lshl_add_u32 v10, v11, 2, v10
            v_add_u32 v10, {L_CS}, v10
            ds_write_b32 v10, v80
            ds_write_b32 v10, v81 offset:128
            ds_write_b32 v10, v82 offset:256
            s_waitcnt lgkmcnt(0)""")
    lds_inc(p, 'v12', L_STAT - MISC)

def stat_cols(p, cfg):
    p.I("""v_lshrrev_b32 v13, 5, v0
           v_bfe_u32 v14, v0, 2, 2
           v_lshl_add_u32 v10, v13, 3, v14
           v_lshlrev_b32 v10, 7, v10
           v_lshrrev_b32 v14, 1, v14
           v_lshl_add_u32 v10, v14, 6, v10
           v_bfe_u32 v14, v0, 4, 1
           v_lshl_add_u32 v10, v14, 5, v10
           v_and_b32 v14, 3, v0
           v_lshl_add_u32 v10, v14, 3, v10
           v_add_u32 v10, 16384, v10
           v_xor_b32 v11, 64, v10""")
    for T_ in range(6):
        q_, half = T_ >> 1, T_ & 1
        for ks in range(4):
            d = 16 + 16*T_ + 4*ks; o = q_*8192 + ks*2048
            p.I(f"ds_read_b64_tr_b16 {rng(d,2)}, v{10+half} offset:{o}")
            p.I(f"ds_read_b64_tr_b16 {rng(d+2,2)}, v{10+half} offset:{o+512}")
        if T_ % 1 == 0 and T_ < 5: p.I("s_waitcnt lgkmcnt(7)")
    p.I("s_waitcnt lgkmcnt(0)")
    lds_inc(p, 'v12', L_FREE - MISC)
    p.I("s_mov_b32 s46, 0xffff0000")
    for T_ in range(6):
        p.I(f"v_mov_b32 v{112+2*T_}, 0\n v_mov_b32 v{113+2*T_}, 0")
    for d in range(16):
        for T_ in range(6):
            x = 16 + 16*T_ + d; t = 124 + 2*(T_ & 1)
            p.I(f"""v_lshlrev_b32 v{t}, 16, v{x}
                    v_and_b32 v{t+1}, s46, v{x}
                    v_add_f32 v{112+2*T_}, v{112+2*T_}, v{t}
                    v_add_f32 v{113+2*T_}, v{113+2*T_}, v{t+1}""")
    for T_ in range(6):
        p.I(f"v_add_f32 v{112+2*T_}, v{112+2*T_}, v{113+2*T_}")
        half_sum(p, 112 + 2*T_, 1)
    p.I(f"""v_cmp_gt_u32 vcc, 32, v0
            v_cndmask_b32 v16, v118, v112, vcc
            v_cndmask_b32 v17, v120, v114, vcc
            v_cndmask_b32 v18, v122, v116, vcc
            v_mov_b32 v19, s42
            s_cmp_lt_u32 s4, 8
            s_cbranch_scc0 L_SC_NOPUB
            s_lshl_b32 s44, s5, 3
            s_add_u32 s44, s44, s7
            s_lshl_b32 s44, s44, 10
            s_add_u32 s44, s44, {WS_CP}
            v_lshlrev_b32 v11, 4, v0
            buffer_store_dwordx4 v[16:19], v11, s[28:31], s44 offen sc1
        L_SC_NOPUB:""")


def lds_inc(p, vaddr, off=0):
    p.I(f"""s_mov_b64 exec, 1
            ds_add_u32 {vaddr}, v9 offset:{off}
            s_mov_b64 exec, -1""")

def loader(p, cfg, T):
    srd(p, 8, 64, 2048*512*2)
    srd(p, 12, 66, 512*1536*2)
    srd(p, 16, 72, 512*1376*2)
    p.I("""s_cmp_eq_u32 s6, 0
           s_cselect_b32 s20, s12, s16
           s_cselect_b32 s21, s13, s17
           s_cselect_b32 s22, s14, s18
           s_mov_b32 s23, 0x20000""")
    p.I(f"""v_lshrrev_b32 v10, 3, v0
            v_and_b32 v11, 7, v0
            v_lshrrev_b32 v13, 4, v0
            v_xor_b32 v14, v11, v13
            v_lshlrev_b32 v14, 4, v14
            v_lshl_add_u32 v2, v10, 10, v14
            v_xor_b32 v3, 64, v2
            v_bfe_u32 v13, v0, 4, 1
            v_lshlrev_b32 v13, 2, v13
            v_xor_b32 v14, v11, v13
            v_lshlrev_b32 v14, 4, v14
            v_mul_u32_u24 v4, 3072, v10
            v_add_u32 v4, v4, v14
            v_mul_u32_u24 v5, 2752, v10
            v_add_u32 v5, v5, v14
            s_cmp_eq_u32 s6, 0
            s_cselect_b64 vcc, -1, 0
            v_cndmask_b32 v6, v5, v4, vcc
            v_mov_b32 v12, {MISC}
            v_mov_b32 v9, 1""")
    p.I(f"""s_cmp_eq_u32 s6, 0
            s_cbranch_scc0 L_L_TB
            s_lshl_b32 s44, s5, 7
            s_add_u32 s52, s44, 1024
            s_add_u32 s53, s44, 2048
            s_mov_b32 s54, s44
            s_mov_b32 s55, {8*3072}
            s_mov_b32 s56, {64*3072}
            s_branch L_L_TD
        L_L_TB:
            s_sub_u32 s44, s5, 8
            s_lshl_b32 s52, s44, 7
            s_lshl_b32 s44, s44, 8
            s_add_u32 s53, s44, 1024
            s_add_u32 s54, s44, 1152
            s_mov_b32 s55, {8*2752}
            s_mov_b32 s56, {64*2752}
        L_L_TD:
            s_lshl_b32 s57, s4, 17
            s_mov_b32 s58, 0
            s_mov_b32 s59, 0""")
    half = 10
    def body(tag, pieces):
        p.L(f'L_L{tag}_LOOP')
        p.I(f"""s_add_u32 s60, s58, s7
                s_and_b32 s60, s60, 7
                s_cmp_lt_u32 s58, 3
                s_cbranch_scc1 L_L{tag}_GO
                s_lshl_b32 s44, s58, 2
                s_add_u32 s44, s44, {L_FREE - 12}
                v_mov_b32 v13, s44""")
        p.I("s_cmp_eq_u32 s58, 3\n s_cselect_b32 s47, 6, 4")
        spin_lds_ge(p, f'L_L{tag}_FR', 'v13', 0, 's47')
        p.L(f'L_L{tag}_GO')
        if cfg.tschunk and tag == 'X':
            p.I("""s_memrealtime s[46:47]
                   s_waitcnt lgkmcnt(0)
                   s_mov_b32 m0, s58
                   v_writelane_b32 v20, s46, m0""")
        p.I(f"""s_lshl_b32 s61, s60, 7
                s_add_u32 s61, s61, s57
                s_mul_i32 s62, s60, {64*3072}
                s_add_u32 s62, s62, s52
                s_mul_i32 s63, s60, s56
                s_add_u32 s63, s63, s53
                s_mul_i32 s48, s60, {64*2752}
                s_add_u32 s48, s48, s54""")
        if tag == 'W': p.I(f"s_add_u32 s62, s62, {4*8*3072}")
        for n, (lo, vr, S, ar, st) in enumerate(pieces):
            if n == half:
                p.I(f"""s_cmp_eq_u32 s58, 0
                        s_cbranch_scc1 L_L{tag}_NF
                        s_waitcnt vmcnt({half})
                        s_lshl_b32 s44, s58, 2
                        s_add_u32 s44, s44, {L_FULL - 4}
                        v_mov_b32 v14, s44""")
                lds_inc(p, 'v14')
                p.L(f'L_L{tag}_NF')
            p.I(f"""s_add_u32 m0, s59, {lo}
                    s_mov_b32 s47, {ar}
                    s_add_u32 {ar}, {ar}, {st}
                    buffer_load_dwordx4 v{vr}, {S}, s47 offen lds""") if False else None
            p.I(f"s_add_u32 m0, s59, {lo}")
            p.I(f"s_add_u32 {ar}, {ar}, {st}")
            p.I(f"buffer_load_dwordx4 v{vr}, {S}, {ar} offen lds")
        p.I(f"""s_cmp_lg_u32 s58, 0
                s_cbranch_scc1 L_L{tag}_NB
                s_barrier
            L_L{tag}_NB:
                s_add_u32 s59, s59, {SLOT}
                s_cmp_eq_u32 s59, {3*SLOT}
                s_cselect_b32 s59, 0, s59
                s_add_u32 s58, s58, 1
                s_cmp_lt_u32 s58, 8
                s_cbranch_scc1 L_L{tag}_LOOP""")
    px = [(pc*1024, 2 + (pc & 1), 's[8:11]', 's61', 8192) for pc in range(16)] + \
         [(16384 + g*1024, 4, 's[12:15]', 's62', 8*3072) for g in range(4)]
    pw = []
    for g in range(8):
        pw.append((16384 + 8192 + g*1024, 6, 's[20:23]', 's63', 's55'))
        pw.append((16384 + 16384 + g*1024, 5, 's[16:19]', 's48', 8*2752))
        if g % 2 == 1: pw.append((16384 + (4 + g//2)*1024, 4, 's[12:15]', 's62', 8*3072))
    p.I(f"""s_sub_u32 s57, s57, 8192
            s_sub_u32 s52, s52, {8*3072}
            s_sub_u32 s53, s53, s55
            s_sub_u32 s54, s54, {8*2752}
            s_cmp_eq_u32 s49, 0
            s_cbranch_scc0 L_LW_START""")
    body('X', px)
    if cfg.tschunk:
        p.I(f"""s_memrealtime s[46:47]
               s_waitcnt lgkmcnt(0)
               v_writelane_b32 v20, s46, 8
               s_lshl_b32 s44, s2, 8
               s_add_u32 s44, s44, {WS_DBG}
               v_lshlrev_b32 v21, 2, v0
               s_mov_b64 exec, 0xffff
               buffer_store_dword v20, v21, s[28:31], s44 offen
               s_mov_b64 exec, -1""")
    p.I("s_branch L_L_END")
    p.L('L_LW_START')
    body('W', pw)
    p.L('L_L_END')
    lds_inc(p, 'v12', L_ISS - MISC)
    p.I("s_waitcnt vmcnt(0)")
    lds_inc(p, 'v12', L_FULL - MISC + 28)
    spin_lds_ge(p, 'L_L_GI', 'v12', L_GISS - MISC, 1)
    T.stamp(p, 1)

AR = 16
RB = 64
KVC = 160
def ACC2(cg, rg): return 192 + 32*cg + 16*rg
NH = 22
NR = 12
NK = NH + 8

def tagcheck(p, acc, tmp, regs):
    first = True
    for r, sg in regs:
        if first: p.I(f"v_xor_b32 v{acc}, {sg}, v{r}"); first = False
        else: p.I(f"v_xor_b32 v{tmp}, {sg}, v{r}\n v_or_b32 v{acc}, v{acc}, v{tmp}")

def reducer(p, cfg, Rb=64):
    p.I(f"""s_and_b32 s61, s4, 3
            s_lshr_b32 s63, s4, 2
            s_lshl_b32 s62, s5, 2
            s_add_u32 s62, s62, s61
            v_lshrrev_b32 v20, 4, v0
            v_and_b32 v21, 15, v0
            v_lshlrev_b32 v22, 11, v20
            v_lshl_add_u32 v22, v21, 4, v22
            v_and_b32 v23, 31, v0
            v_lshlrev_b32 v23, 4, v23
            s_mov_b32 s48, 0
            s_lshl_b32 s47, s62, 12
            s_lshl_b32 s46, s63, 10
            s_add_u32 s47, s47, s46
            s_add_u32 s47, s47, {WS_ZP}
            buffer_load_dwordx4 v[24:27], v23, s[28:31], s47 offen offset:512 sc1
            s_waitcnt vmcnt(0)""")
    f1_flag(p, 'R')
    p.I(f"""s_branch L_RD_CHK
        L_RD_LIGHT:
            buffer_load_dwordx4 v[24:27], v23, s[28:31], s47 offen offset:512 sc1
            s_waitcnt vmcnt(0)
        L_RD_CHK:
            s_add_u32 s48, s48, 1
            v_xor_b32 v18, s42, v26
            v_xor_b32 v19, s43, v27
            v_or_b32 v18, v18, v19
            v_cmp_ne_u32 vcc, 0, v18
            s_cmp_eq_u64 vcc, 0
            s_cbranch_scc1 L_RD_RETRY
            s_cmp_ge_u32 s48, {SPIN_MAX >> 5}
            s_cbranch_scc1 L_RD_RETRY
            s_sleep {cfg.slp_red}
            s_branch L_RD_LIGHT
        L_RD_RETRY:
            s_lshl_b32 s44, s62, 16
            s_lshl_b32 s45, s63, 9
            s_add_u32 s44, s44, s45
            s_add_u32 s44, s44, {WS_KVP}
            buffer_load_dwordx4 v[24:27], v23, s[28:31], s47 offen sc1
            buffer_load_dwordx4 v[28:31], v23, s[28:31], s47 offen offset:512 sc1""")
    for u in range(8):
        p.I(f"""buffer_load_dwordx4 {rng(Rb+8*u,4)}, v22, s[28:31], s44 offen sc1
                buffer_load_dwordx4 {rng(Rb+4+8*u,4)}, v22, s[28:31], s44 offen offset:256 sc1
                s_add_u32 s44, s44, 8192""")
    p.I("s_waitcnt vmcnt(0)")
    regs = []
    for b in [Rb + 4*k for k in range(16)] + [24, 28]: regs += [(b+2, 's42'), (b+3, 's43')]
    tagcheck(p, 18, 19, regs)
    p.I(f"""v_cmp_ne_u32 vcc, 0, v18
            s_add_u32 s48, s48, 1
            s_cmp_eq_u64 vcc, 0
            s_cbranch_scc1 L_RD_OK
            s_cmp_ge_u32 s48, {SPIN_MAX >> 5}
            s_cbranch_scc1 L_RD_OK
            s_sleep 1
            s_branch L_RD_RETRY
        L_RD_OK:""")
    kv = (Rb, Rb+1, Rb+4, Rb+5)
    for u in range(1, 8):
        for r in kv: p.I(f"v_add_f32 v{r}, v{r}, v{r + 8*u}")
    for r in kv:
        half_sum(p, r, 1)
        p.I(f"""v_mov_b32 v1, v{r}
                v_permlane16_swap_b32 v{r}, v1
                v_add_f32 v{r}, v{r}, v1""")
    for r in (24, 25, 28, 29):
        for sh in (8, 4, 2, 1):
            p.I(f"v_add_f32_dpp v{r}, v{r}, v{r} row_ror:{sh} row_mask:0xf bank_mask:0xf")
        p.I(f"""v_mov_b32 v1, v{r}
                v_permlane16_swap_b32 v{r}, v1
                v_add_f32 v{r}, v{r}, v1""")
    p.I(f"""v_cmp_gt_u32 vcc, 16, v0
            v_cndmask_b32 v24, v24, v{kv[0]}, vcc
            v_cndmask_b32 v25, v25, v{kv[1]}, vcc
            v_cndmask_b32 v28, v28, v{kv[2]}, vcc
            v_cndmask_b32 v29, v29, v{kv[3]}, vcc
            v_cvt_pk_bf16_f32 v16, v24, v25
            v_cvt_pk_bf16_f32 v17, v28, v29
            v_mov_b32 v18, s42
            v_mov_b32 v19, s43
            v_subrev_u32 v24, 16, v0
            v_lshlrev_b32 v24, 2, v24
            v_add_u32 v24, 16, v24
            v_cndmask_b32 v24, v24, v0, vcc
            v_lshlrev_b32 v24, 4, v24
            s_lshl_b32 s44, s62, 11
            s_lshl_b32 s45, s63, 9
            s_add_u32 s44, s44, s45
            s_add_u32 s44, s44, {WS_KVF}
            s_mov_b64 exec, 0x3ffff
            buffer_store_dwordx4 v[16:19], v24, s[28:31], s44 offen sc1
            s_mov_b64 exec, -1""")

def phase2(p, cfg, T0):
    class _T:
        def stamp(self, p, idx):
            if not cfg.tsA: T0.stamp(p, idx)
    T = _T()
    def TA(idx):
        if cfg.tsA and not cfg.tsR: T0.stamp(p, idx)
    def TR(idx):
        if cfg.tsR: T0.stamp(p, idx)
    srd(p, 20, 76, 1376*512*2)
    srd(p, 24, 68, 512*512*2)
    srd(p, 8, 64, 2048*512*2)
    srd(p, 32, 80, 2048*512*2)
    srd(p, 36, 78, 1024)
    p.I(f"""s_and_b32 s50, s49, 1
            s_lshr_b32 s51, s49, 1
            v_lshrrev_b32 v10, 3, v0
            v_and_b32 v11, 7, v0
            v_bfe_u32 v13, v0, 4, 1
            v_lshlrev_b32 v13, 2, v13
            v_xor_b32 v14, v11, v13
            v_lshlrev_b32 v14, 4, v14
            v_lshl_add_u32 v3, v10, 10, v14
            s_lshl_b32 s44, s51, 10
            v_lshlrev_b32 v2, 4, v0
            v_add_u32 v2, s44, v2
            v_xor_b32 v15, 0x400, v2
            v_mov_b32 v12, {MISC}""")
    p.I(f"""v_lshrrev_b32 v10, 5, v0
            v_bfe_u32 v11, v0, 2, 2
            v_lshl_add_u32 v13, v10, 2, v11
            v_lshlrev_b32 v13, 7, v13
            v_lshrrev_b32 v14, 1, v11
            v_xor_b32 v14, s50, v14
            v_lshl_add_u32 v13, v14, 6, v13
            v_bfe_u32 v14, v0, 4, 1
            v_lshl_add_u32 v13, v14, 5, v13
            v_and_b32 v14, 3, v0
            v_lshl_add_u32 v13, v14, 3, v13""")
    p.I(f"""s_lshl_b32 s44, s49, 13
            s_add_u32 s52, s44, {MSEG}
            s_mul_i32 s44, s49, 10240
            s_add_u32 s53, s44, {2*SLOT}
            s_mov_b32 s54, s44
            s_add_u32 s55, s44, {SLOT}""")
    for k in range(4):
        p.I(f"""v_add_u32 v{4+2*k}, s{52+k}, v13
                v_xor_b32 v{5+2*k}, 64, v{4+2*k}""")
    cells = [(0, n) for n in range(4)] + [(1, n) for n in range(5)] + [(2, n) for n in range(5)] + [(3, n) for n in range(5)]
    Rcell = cells[:NR]
    Lcell = cells[NR:19] + cells[0:11]
    p.I(f"""s_mul_i32 s56, s49, {22*16*1024}
            s_lshl_b32 s44, s41, 7
            s_add_u32 s56, s56, s44
            s_lshl_b32 s57, s49, 17
            s_add_u32 s57, s57, s44""")
    p.I(f"""s_and_b32 s44, s40, 3
            s_lshl_b32 s44, s44, 1
            s_add_u32 s44, s44, s41
            s_and_b32 s82, s44, 7
            s_mul_i32 s83, s82, 22
            s_lshr_b32 s83, s83, 3""")
    if not cfg.rot2:
        p.I("s_mov_b32 s82, 0\n s_mov_b32 s83, 0")
    p.I("s_mov_b32 s61, s83\n s_mov_b32 s62, s82")
    def next_idx(reg, n):
        p.I(f"""s_add_u32 {reg}, {reg}, 1
                s_cmp_eq_u32 {reg}, {n}
                s_cselect_b32 {reg}, 0, {reg}""")
    def issue(kidx, cell):
        reg, n = cell
        if kidx < NH: S, sb, ir, nn = 's[20:23]', 's56', 's61', NH
        else: S, sb, ir, nn = 's[24:27]', 's57', 's62', 8
        p.I(f"""s_lshl_b32 s44, {ir}, 14
                s_add_u32 s44, s44, {sb}
                s_add_u32 m0, s{52+reg}, {n*2048}
                s_add_u32 s45, s44, 8192
                buffer_load_dwordx4 v3, {S}, s44 offen lds
                s_add_u32 m0, s{52+reg}, {n*2048 + 1024}""")
        next_idx(ir, nn)
        p.I(f"buffer_load_dwordx4 v3, {S}, s45 offen lds")
    def readB(cell, dst):
        reg, n = cell
        out = []
        for cg in range(2):
            a = 4 + 2*reg + cg
            out.append(f"ds_read_b64_tr_b16 {rng(dst+4*cg,2)}, v{a} offset:{n*2048}")
            out.append(f"ds_read_b64_tr_b16 {rng(dst+4*cg+2,2)}, v{a} offset:{n*2048+1024}")
        return out
    kcell = Rcell + Lcell
    for k in range(0, 4): issue(k, kcell[k])
    epoch_tag(p)
    spin_lds_ge(p, 'L_P2_W5', 'v12', L_FREE - MISC + 20, 4)
    for k in range(4, 9): issue(k, kcell[k])
    spin_lds_ge(p, 'L_P2_W6', 'v12', L_FREE - MISC + 24, 4)
    for k in range(9, 14): issue(k, kcell[k])
    spin_lds_ge(p, 'L_P2_W7', 'v12', L_FREE - MISC + 28, 4)
    for k in range(14, 19): issue(k, kcell[k])
    T.stamp(p, 2)
    p.I("s_waitcnt vmcnt(30)")
    for k in range(0, 4):
        for x in readB(kcell[k], RB + 8*k): p.I(x)
        if k == 2: p.I("s_waitcnt lgkmcnt(4)")
    p.I("s_waitcnt lgkmcnt(0)")
    for k in range(19, 23): issue(k, kcell[k])
    p.I("s_waitcnt vmcnt(28)")
    for k in range(4, 9):
        for x in readB(kcell[k], RB + 8*k): p.I(x)
        if k in (6,): p.I("s_waitcnt lgkmcnt(4)")
    p.I("s_waitcnt lgkmcnt(0)")
    for k in range(23, 28): issue(k, kcell[k])
    p.I("s_waitcnt vmcnt(32)")
    for k in range(9, 12):
        for x in readB(kcell[k], RB + 8*k): p.I(x)
    p.I("s_waitcnt lgkmcnt(0)")
    for k in range(28, 30): issue(k, kcell[k])
    T.stamp(p, 3)
    G0 = RB + 16
    def kv_loads():
        p.I(f"""v_lshrrev_b32 v14, 5, v0
                v_lshlrev_b32 v14, 9, v14
                v_and_b32 v13, 31, v0
                v_lshl_add_u32 v14, v13, 4, v14
                s_lshl_b32 s46, s49, 14
                s_add_u32 s46, s46, {WS_KVF}
                s_mov_b32 s47, s82""")
        for hd in range(8):
            p.I(f"""s_lshl_b32 s44, s47, 11
                    s_add_u32 s44, s44, s46
                    buffer_load_dwordx4 {rng(G0+8*hd,4)}, v14, s[28:31], s44 offen sc1
                    buffer_load_dwordx4 {rng(G0+8*hd+4,4)}, v14, s[28:31], s44 offen offset:1024 sc1""")
            next_idx('s47', 8)
    def kv_validate():
        p.I("s_mov_b32 s48, 0")
        p.L('L_KV_CHK')
        regs = []
        for hd in range(8):
            for b in (G0+8*hd, G0+8*hd+4): regs += [(b+2, 's42'), (b+3, 's43')]
        tagcheck(p, 13, 1, regs)
        p.I(f"""v_cmp_ne_u32 vcc, 0, v13
                s_and_b32 vcc_lo, vcc_lo, 0x0011ffff
                s_and_b32 vcc_hi, vcc_hi, 0x0011ffff
                s_add_u32 s48, s48, 1
                s_cmp_eq_u64 vcc, 0
                s_cbranch_scc1 L_KV_OK
                s_cmp_ge_u32 s48, {SPIN_MAX >> 5}
                s_cbranch_scc1 L_KV_OK
                s_sleep {cfg.slp_kv}""")
        kv_loads()
        p.I("""s_waitcnt vmcnt(0)
               s_branch L_KV_CHK
            L_KV_OK:""")
        for hd in range(8):
            p.I(f"""v_mov_b32 v{KVC+4*hd}, v{G0+8*hd}
                    v_mov_b32 v{KVC+4*hd+1}, v{G0+8*hd+1}
                    v_mov_b32 v{KVC+4*hd+2}, v{G0+8*hd+4}
                    v_mov_b32 v{KVC+4*hd+3}, v{G0+8*hd+5}""")
    for r in range(192, 256): p.I(f"v_mov_b32 v{r}, 0")
    p.I(f"""v_and_b32 v14, 31, v0
            s_lshl_b32 s44, s40, 5
            v_add_u32 v14, s44, v14
            v_mul_u32_u24 v14, {FS}, v14
            v_add_u32 v14, {WS_F1}, v14""")
    poll_flags(p, 'L_P2_F1', 'v14', 16, 64, sleep=cfg.slp_f1)
    T.stamp(p, 4); TA(1)
    p.I(f"""s_mul_i32 s58, s40, {HF_IB}
            s_add_u32 s58, s58, {WS_HF}
            s_mul_i32 s59, s49, 22
            s_mul_i32 s60, s40, {PQ_IB}
            s_lshl_b32 s44, s49, 14
            s_add_u32 s60, s60, s44
            s_add_u32 s60, s60, {WS_PQ}
            s_mov_b32 s61, s83
            s_mov_b32 s62, s82""")
    sc = 'sc1' if cfg.asc1 else ''
    def issueA(u):
        slot = AR + 8*(u % 6)
        if u < NH:
            p.I(f"""s_add_u32 s44, s59, s61
                    s_min_u32 s44, s44, 85
                    s_lshl_b32 s44, s44, 11
                    s_add_u32 s44, s44, s58""")
            next_idx('s61', NH)
        else:
            p.I(f"""s_lshl_b32 s44, s62, 11
                    s_add_u32 s44, s44, s60""")
            next_idx('s62', 8)
        p.I(f"""buffer_load_dwordx4 {rng(slot,4)}, v2, s[28:31], s44 offen {sc}
                buffer_load_dwordx4 {rng(slot+4,4)}, v15, s[28:31], s44 offen {sc}""")
    vm = []
    for u in range(6):
        issueA(u); vm += [('A', u)] * 2
    def wait_for(tag):
        cand = [i for i, t in enumerate(vm) if t == tag]
        if not cand: return
        n = len(vm) - 1 - max(cand)
        p.I(f"s_waitcnt vmcnt({n})")
        del vm[:max(cand) + 1]
    LB = [RB, RB + 8]
    def CBUF(n): return RB + 16 + 16*(n % 3)
    def OFR(hd, rg): return RB + 64 + 8*(hd & 1) + 4*rg
    XRES = RB + 80; BRES = RB + 88
    for u in range(NH):
        wait_for(('A', u))
        slot = AR + 8*(u % 6)
        if u < NR: B = RB + 8*u
        else:
            B = LB[u & 1]
            p.I("s_waitcnt lgkmcnt(0)")
        nxt = []
        if u + 1 >= NR: nxt = readB(kcell[u + 1], LB[(u + 1) & 1])
        m = 0
        for cg in range(2):
            for rg in range(2):
                a = ACC2(cg, rg)
                p.I(f"v_mfma_f32_32x32x16_bf16 {rng(a,16)}, {rng(B+4*cg,4)}, {rng(slot+4*rg,4)}, {rng(a,16)}")
                if m < len(nxt): p.I(nxt[m])
                m += 1
        if u + 6 < NK:
            issueA(u + 6); vm.extend([('A', u + 6)] * 2)
        if u in (2, 7, 13, 21): TA({2: 3, 7: 4, 13: 5, 21: 6}[u])
        if u == cfg.kv_issue:
            kv_loads(); vm.extend([('K', 0)] * 16)
        if u == NH - 1:
            wait_for(('K', 0))
            kv_validate()
        if u == 19:
            p.I(f"""v_and_b32 v10, 31, v0
                    s_lshl_b32 s44, s40, 6
                    s_lshl_b32 s45, s51, 5
                    s_add_u32 s44, s44, s45
                    v_add_u32 v10, s44, v10
                    v_lshlrev_b32 v1, 10, v10
                    s_lshl_b32 s44, s41, 7
                    s_lshl_b32 s45, s50, 6
                    s_add_u32 s63, s44, s45
                    v_lshrrev_b32 v13, 5, v0
                    v_lshl_add_u32 v12, v13, 4, v1
                    v_lshl_add_u32 v14, v13, 3, v1
                    v_lshlrev_b32 v13, 3, v13""") if False else None
    T.stamp(p, 5)
    p.I(f"""v_and_b32 v12, 31, v0
            s_lshl_b32 s44, s40, 6
            s_lshl_b32 s45, s51, 5
            s_add_u32 s44, s44, s45
            v_add_u32 v12, s44, v12
            v_lshlrev_b32 v12, 10, v12
            s_lshl_b32 s44, s41, 7
            s_lshl_b32 s45, s50, 6
            s_add_u32 s63, s44, s45
            v_lshrrev_b32 v13, 5, v0
            v_lshl_add_u32 v14, v13, 3, v12
            v_lshlrev_b32 v1, 3, v13""")
    for g in range(4):
        p.I(f"buffer_load_dwordx2 {rng(XRES+2*g,2)}, v14, s[8:11], s63 offen offset:{g*16}")
        p.I(f"buffer_load_dwordx2 {rng(BRES+2*g,2)}, v1, s[36:39], s63 offen offset:{g*16}")
        vm.extend([('R', 0)] * 2)
    p.I("v_lshl_add_u32 v12, v13, 4, v12")
    def stepA(n):
        hd, rg = n >> 1, n & 1
        u = NH + hd
        slot = AR + 8*(u % 6)
        if rg == 0: wait_for(('A', u))
        p.I(f"v_mfma_f32_32x32x16_bf16 {rng(CBUF(n),16)}, {rng(KVC+4*hd,4)}, {rng(slot+4*rg,4)}, 0")
        if rg == 1 and u + 6 < NK:
            issueA(u + 6); vm.extend([('A', u + 6)] * 2)
    def stepB(n):
        hd, rg = n >> 1, n & 1
        c = CBUF(n); o = OFR(hd, rg)
        p.I(f"""v_add_f32 v{c+8}, {fhex(1e-6)}, v{c+8}
                v_rcp_f32 v{c+8}, v{c+8}""")
        for k in range(8): p.I(f"v_mul_f32 v{c+k}, v{c+k}, v{c+8}")
        for k in range(4): p.I(f"v_cvt_pk_bf16_f32 v{o+k}, v{c+2*k}, v{c+2*k+1}")
    def stepC(hd):
        u = NH + hd
        B = LB[u & 1]
        p.I("s_waitcnt lgkmcnt(0)")
        nxt = readB(kcell[u + 1], LB[(u + 1) & 1]) if u + 1 < NK else []
        m = 0
        for rg in range(2):
            for cg in range(2):
                a = ACC2(cg, rg); o = OFR(hd, rg)
                p.I(f"v_mfma_f32_32x32x16_bf16 {rng(a,16)}, {rng(B+4*cg,4)}, {rng(o,4)}, {rng(a,16)}")
                if m < len(nxt): p.I(nxt[m])
                m += 1
    stepA(0); stepA(1)
    for n in range(16):
        stepB(n)
        if n + 2 < 16: stepA(n + 2)
        if n & 1: stepC(n >> 1)
    T.stamp(p, 6); TA(7)
    p.I("""v_lshlrev_b32 v13, 4, v0
           v_add_u32 v14, s55, v13
           v_add_u32 v1, s54, v13""")
    for k in (1, 2, 3):
        a = ACC2(k & 1, k >> 1)
        for g in range(4):
            if k < 3: p.I(f"ds_write_b128 v14, {rng(a+4*g,4)} offset:{(k-1)*4096 + g*1024}")
            else:     p.I(f"ds_write_b128 v1, {rng(a+4*g,4)} offset:{g*1024}")
    RD = 16
    for k in (1, 2, 3):
        p.I(f"""s_xor_b32 s44, s49, {k}
                s_mul_i32 s44, s44, 10240
                s_add_u32 s44, s44, {SLOT + (k-1)*4096 if k < 3 else 0}
                v_add_u32 v{4+k}, s44, v13""")
    p.I("""s_waitcnt lgkmcnt(0)
           s_barrier""")
    for k in (1, 2, 3):
        for g in range(4): p.I(f"ds_read_b128 {rng(RD+16*(k-1)+4*g,4)}, v{4+k} offset:{g*1024}")
    OWN = ACC2(0, 0)
    p.I("s_mov_b32 s46, 0xffff0000")
    wait_for(('R', 0))
    XB = RB + 16
    for g in range(4):
        for hlf in range(2):
            xr = XRES + 2*g + hlf; br = BRES + 2*g + hlf; r0 = XB + 4*g + 2*hlf
            p.I(f"""v_lshlrev_b32 v{r0}, 16, v{xr}
                    v_and_b32 v{r0+1}, s46, v{xr}
                    v_lshlrev_b32 v{RB}, 16, v{br}
                    v_and_b32 v{RB+1}, s46, v{br}
                    v_add_f32 v{r0}, v{r0}, v{RB}
                    v_add_f32 v{r0+1}, v{r0+1}, v{RB+1}
                    v_add_f32 v{OWN+4*g+2*hlf}, v{OWN+4*g+2*hlf}, v{r0}
                    v_add_f32 v{OWN+4*g+2*hlf+1}, v{OWN+4*g+2*hlf+1}, v{r0+1}""")
    p.I("s_waitcnt lgkmcnt(0)")
    for r in range(16):
        p.I(f"""v_add_f32 v{RD+r}, v{RD+r}, v{RD+16+r}
                v_add_f32 v{OWN+r}, v{OWN+r}, v{RD+32+r}""")
    for r in range(16): p.I(f"v_add_f32 v{OWN+r}, v{OWN+r}, v{RD+r}")
    for k in range(8): p.I(f"v_cvt_pk_bf16_f32 v{RB+k}, v{OWN+2*k}, v{OWN+2*k+1}")
    p.I(f"""v_permlane32_swap_b32 v{RB}, v{RB+2}
            v_permlane32_swap_b32 v{RB+1}, v{RB+3}
            v_permlane32_swap_b32 v{RB+4}, v{RB+6}
            v_permlane32_swap_b32 v{RB+5}, v{RB+7}
            buffer_store_dwordx4 {rng(RB,4)}, v12, s[32:35], s63 offen
            buffer_store_dwordx4 {rng(RB+4,4)}, v12, s[32:35], s63 offen offset:32""")
    T.stamp(p, 7)
    dump_ts(p, cfg, T0, 8)

if __name__ == '__main__':
    cfg = Cfg()
    out = f'cdna_kernels/{NAME}.s'
    for a in sys.argv[1:]:
        if a == 'ts': cfg.ts = True
        elif a.startswith('rot='): cfg.rot = a[4:]
        elif a.startswith('fullpt='): cfg.fullpt = int(a[7:])
        elif a.startswith('out='): out = a[4:]
        elif a == 'fullwait0': cfg.fullwait0 = True
        elif a == 'dbgstats': cfg.dbgstats = True
        elif a == 'tschunk': cfg.tschunk = True
        elif a == 'norot2': cfg.rot2 = False
        elif a == 'tsA': cfg.tsA = True
        elif a == 'tsR': cfg.tsR = True; cfg.tsA = True
        elif a.startswith('slp_') or a.startswith('kv_issue'): k, v = a.split('='); setattr(cfg, k, int(v))
        elif a == 'noasc1': cfg.asc1 = False
        elif a == 'tscyc': cfg.tscyc = True
        elif a == 'tsallcyc': cfg.tsallcyc = True
        elif a == 'dbgout': cfg.dbgout = True; cfg.ts = True
        elif a == 'nodot': cfg.nodot = True
    p = build(cfg)
    s = p.text()
    open(out, 'w').write(s)
    print('written', out, p.stats)
```

```python
import sys
sys.path.insert(0, 'dev')
from asmlib import Prog

NAME = 'parallel_sum__linear_attn_block__dense_activation_gelu__prompt'

FS = 32
WS_F1 = 0x1000
WS_F2 = 0x9000
WS_FK = 0x9000
WS_FR = 0xD000
WS_RP = 0x140000
WS_CP = 0x180000
WS_KVF = 0x10000
WS_ZP = 0x20000
WS_KVP = 0x600000 + 0x400000
WS_PQ = 0x200000
WS_HF = 0x400000
WS_TS = 0xC00000
WS_DBG = 0xC40000
WS_SIZE = 0x1000000
HF_IB = 86 * 2048
PQ_IB = 32 * 2048
SLOT = 40960
MISC = 3 * SLOT
L_FULL = MISC
L_FUB = MISC + 192
L_FREE = MISC + 64
L_ISS = MISC + 128
L_STAT = MISC + 132
L_GISS = MISC + 136
L_F1 = MISC + 148
L_EPI = MISC + 144
L_G0 = MISC + 140
L_RF = MISC + 256
L_ST = MISC + 2304
L_RSTD = MISC + 3328
L_CF = MISC + 3840
MSEG = MISC + 8192
LDS_SIZE = 163840

SPIN_MAX = 1 << 22

class Cfg:
    rot = 'i2j'
    ts = False
    fullpt = 20
    stop_after = None
    fullwait0 = False
    dbgstats = False
    tschunk = False
    tscyc = False
    tsallcyc = False
    dbgout = False
    rot2 = True
    tsA = False
    cntspin = False
    flagpos = 2
    freepos = 0
    nosync = False
    tsR = False
    tsT = False
    kv_issue = 14
    bwait = 1
    bgap = 17
    slp_lds = 4
    biss = 0
    twolevel = 0
    onepoll = 1
    f2_issue = 10
    bdepth = 0
    g0chunk = 6
    fixdur = 0
    outflag = ''
    slp_red = 4
    slp_kv = 8
    slp_f1 = 4
    asc1 = True
    nodot = False

def ts(p, cfg, idx, sreg=90):
    if not cfg.ts: return
    p.I(f"""
        s_memrealtime s[90:91]
        s_lshl_b32 s92, s2, 3
        s_add_u32 s92, s92, s3
        s_lshl_b32 s92, s92, 7
        s_add_u32 s92, s92, {WS_TS + idx*8}
        s_waitcnt lgkmcnt(0)
        v_mov_b32 v250, s90
        v_mov_b32 v251, s91
        v_mov_b32 v252, 0
    """) if False else None

class TS:
    def __init__(self, cfg): self.on = cfg.ts; self.cyc = cfg.tsallcyc
    def stamp(self, p, idx):
        if not self.on: return
        p.I(f"{'s_memtime' if self.cyc else 's_memrealtime'} s[{86+2*idx}:{87+2*idx}]")

def srd(p, d, lo, size):
    p.I(f"""s_mov_b32 s{d}, s{lo}
            s_and_b32 s{d+1}, s{lo+1}, 0xffff
            s_mov_b32 s{d+2}, {size}
            s_mov_b32 s{d+3}, 0x20000""")

def spin_lds_ge(p, name, vaddr, off, val, vt='v1', st='s44', cnt='s45', sleep=0):
    if sleep:
        p.I(f"""s_mov_b32 {cnt}, 0
                s_branch {name}_rd
            {name}_sp:
                s_sleep {sleep}
            {name}_rd:
                ds_read_b32 {vt}, {vaddr} offset:{off}
                s_add_u32 {cnt}, {cnt}, 1
                s_waitcnt lgkmcnt(0)
                v_readfirstlane_b32 {st}, {vt}
                s_cmp_ge_u32 {cnt}, {SPIN_MAX}
                s_cbranch_scc1 {name}_ok
                s_cmp_ge_u32 {st}, {val}
                s_cbranch_scc0 {name}_sp
            {name}_ok:""")
        return
    p.I(f"""s_mov_b32 {cnt}, 0
        {name}_sp:
            ds_read_b32 {vt}, {vaddr} offset:{off}
            s_add_u32 {cnt}, {cnt}, 1
            s_waitcnt lgkmcnt(0)
            v_readfirstlane_b32 {st}, {vt}
            s_cmp_ge_u32 {cnt}, {SPIN_MAX}
            s_cbranch_scc1 {name}_ok
            s_cmp_ge_u32 {st}, {val}
            s_cbranch_scc0 {name}_sp
        {name}_ok:""")

def poll_flags(p, name, vaddr, vd, nl, sleep=1):
    mask = (1 << nl) - 1
    p.I(f"""s_mov_b32 s45, 0
        {name}_pl:
            buffer_load_dwordx2 v[{vd}:{vd+1}], {vaddr}, s[28:31], 0 offen sc1
            s_add_u32 s45, s45, 1
            s_waitcnt vmcnt(0)
            v_cmp_ne_u32 vcc, s42, v{vd}
            v_cmp_ne_u32 s[46:47], s43, v{vd+1}
            s_or_b64 vcc, vcc, s[46:47]""")
    if nl < 64:
        lo = mask & 0xffffffff; hi = mask >> 32
        p.I(f"""s_and_b32 vcc_lo, vcc_lo, {hex(lo)}
                s_and_b32 vcc_hi, vcc_hi, {hex(hi)}""")
    p.I(f"""s_cmp_eq_u64 vcc, 0
            s_cbranch_scc1 {name}_ok
            s_cmp_ge_u32 s45, {SPIN_MAX >> 4}
            s_cbranch_scc1 {name}_ok
            s_sleep {sleep}
            s_branch {name}_pl
        {name}_ok:""")

def write_flag(p, soff):
    p.I(f"""v_mov_b32 v60, s42
            v_mov_b32 v61, s43
            v_mov_b32 v62, 0
            s_mov_b64 exec, 1
            buffer_store_dwordx2 v[60:61], v62, s[28:31], {soff} offen sc1
            s_mov_b64 exec, -1""")

def build(cfg=Cfg()):
    p = Prog()
    T = TS(cfg)
    K = f'{NAME}_kernel'
    p.raw(open('cdna_kernels/%s.s.ref' % NAME).read().split('; Override launch')[0].rstrip())
    p.raw('; Override launch geometry by editing the next line (default: block=256,')
    p.raw(f'; @launch grid=(256,1,1) block=(512,1,1) lds={LDS_SIZE}')
    p.raw('.amdgcn_target "amdgcn-amd-amdhsa--gfx950"\n.text')
    p.raw(f'.globl {K}\n.p2align 8\n.type {K},@function')
    p.L(K)
    p.I(f"""
        s_cmp_ge_u32 s2, 256
        s_cbranch_scc1 L_END
        s_load_dwordx16 s[64:79], s[0:1], 0
        s_load_dwordx2 s[80:81], s[0:1], 64
        s_load_dwordx2 s[84:85], s[0:1], 80
    """)
    T.stamp(p, 0)
    if cfg.fixdur: p.I("s_memrealtime s[100:101]")
    p.I(f"""
        v_lshrrev_b32 v1, 6, v0
        v_and_b32 v0, 63, v0
        v_readfirstlane_b32 s3, v1
        s_and_b32 s44, s2, 7
        s_lshr_b32 s45, s2, 3
        s_lshr_b32 s46, s44, 2
        s_lshl_b32 s46, s46, 3
        s_and_b32 s47, s45, 7
        s_add_u32 s4, s46, s47
        s_lshr_b32 s46, s45, 3
        s_lshr_b32 s6, s46, 1
        s_and_b32 s47, s46, 1
        s_and_b32 s48, s44, 3
        s_lshl_b32 s48, s48, 1
        s_add_u32 s48, s48, s47
        s_lshl_b32 s47, s6, 3
        s_add_u32 s5, s48, s47
        s_lshl_b32 s40, s44, 2
        s_and_b32 s47, s45, 3
        s_add_u32 s40, s40, s47
        s_lshr_b32 s41, s45, 2
    """)
    if cfg.rot == 'i2j':
        p.I("s_lshl_b32 s7, s46, 1\n s_add_u32 s7, s7, s4\n s_and_b32 s47, s44, 1\n s_add_u32 s7, s7, s47\n s_and_b32 s7, s7, 7")
    elif cfg.rot == 'none':
        p.I("s_mov_b32 s7, 0")
    elif cfg.rot == 'i':
        p.I("s_and_b32 s7, s4, 7")
    elif cfg.rot == 'half':
        p.I("s_add_u32 s7, s46, s4\n s_and_b32 s7, s7, 3\n s_lshl_b32 s7, s7, 1")
    p.I("s_waitcnt lgkmcnt(0)")
    p.I("s_load_dwordx2 s[42:43], s[84:85], 0")
    srd(p, 28, 84, WS_SIZE)
    p.I("""s_cmp_ge_u32 s3, 4
           s_cbranch_scc1 L_HELPER""")
    compute_waves(p, cfg, T)
    p.L('L_HELPER')
    helper_waves(p, cfg, T)
    p.L('L_END')
    p.I("s_endpgm")
    p.raw(f""".section .rodata,"a"
.p2align 6
.amdhsa_kernel {K}
  .amdhsa_next_free_vgpr 256
  .amdhsa_next_free_sgpr 102
  .amdhsa_accum_offset 256
  .amdhsa_group_segment_fixed_size 0
  .amdhsa_kernarg_size 88
  .amdhsa_user_sgpr_count 2
  .amdhsa_user_sgpr_kernarg_segment_ptr 1
  .amdhsa_system_sgpr_workgroup_id_x 1
.end_amdhsa_kernel""")
    return p

def dump_ts(p, cfg, T, n):
    if not cfg.ts: return
    if cfg.dbgout:
        p.I(f"""s_load_dwordx2 s[84:85], s[0:1], 72
                s_memrealtime s[46:47]
                s_waitcnt lgkmcnt(0)
                s_mov_b32 s28, s84
                s_and_b32 s29, s85, 0xffff
                s_mov_b32 s30, 256
                s_mov_b32 s31, 0x20000
                v_mov_b32 v6, 0
                s_mov_b64 exec, 1
                v_mov_b32 v2, s46
                buffer_atomic_umax v2, v6, s[28:31], 0 offen offset:4
                s_not_b32 s45, s86
                v_mov_b32 v2, s45
                buffer_atomic_umax v2, v6, s[28:31], 0 offen""")
        uid = len(p.items)
        p.I(f"""s_cmp_eq_u32 s2, 5
                s_cbranch_scc0 L_DB{uid}_A
                s_cmp_eq_u32 s3, 1
                s_cbranch_scc0 L_DB{uid}_B
                v_mov_b32 v2, s90
                v_mov_b32 v3, s92
                v_mov_b32 v4, s96
                v_mov_b32 v5, s98
                buffer_store_dwordx4 v[2:5], v6, s[28:31], 0 offen offset:8
                v_mov_b32 v2, s86
                buffer_store_dword v2, v6, s[28:31], 0 offen offset:56
            L_DB{uid}_B:
                s_cmp_eq_u32 s3, 4
                s_cbranch_scc0 L_DB{uid}_A
                v_mov_b32 v2, s94
                v_mov_b32 v3, s96
                v_mov_b32 v4, s98
                v_mov_b32 v5, s100
                buffer_store_dwordx4 v[2:5], v6, s[28:31], 0 offen offset:24
            L_DB{uid}_A:
                s_cmp_eq_u32 s2, 0
                s_cbranch_scc0 L_DB{uid}_C
                s_cmp_eq_u32 s3, 4
                s_cbranch_scc0 L_DB{uid}_C
                v_mov_b32 v2, s94
                v_mov_b32 v3, s96
                v_mov_b32 v4, s98
                v_mov_b32 v5, s100
                buffer_store_dwordx4 v[2:5], v6, s[28:31], 0 offen offset:40
                v_mov_b32 v2, s86
                buffer_store_dword v2, v6, s[28:31], 0 offen offset:60
            L_DB{uid}_C:
                s_mov_b64 exec, -1""")
        return
    p.I(f"""s_waitcnt lgkmcnt(0)
            s_lshl_b32 s44, s2, 3
            s_add_u32 s44, s44, s3
            s_lshl_b32 s44, s44, 6
            s_add_u32 s44, s44, {WS_TS}
            v_mov_b32 v6, 0""")
    for k in range(0, 8, 4):
        p.I(f"""v_mov_b32 v2, s{86+2*k}
                v_mov_b32 v3, s{88+2*k}
                v_mov_b32 v4, s{90+2*k}
                v_mov_b32 v5, s{92+2*k}
                s_mov_b64 exec, 1
                buffer_store_dwordx4 v[2:5], v6, s[28:31], s44 offen offset:{k*4}
                s_mov_b64 exec, -1""")

def epoch_tag(p):
    p.I("""s_waitcnt lgkmcnt(0)
           s_mul_i32 s44, s42, 0x9E3779B1
           s_mul_i32 s43, s43, 0x85EBCA6B
           s_add_u32 s43, s43, s42
           s_add_u32 s43, s43, 0xC2B2AE35
           s_add_u32 s42, s44, 0x7F4A7C15""")

VXA = [2, 3, 4, 5]; VWA = 6; VWB = [17, 18]; VFL = 7; VFA = 8
XS = [10, 12]; XQ = [11, 13]; CS = [14, 15, 16]; VB1 = [17, 18]
def XF(b, rg): return 20 + 8*b + 4*rg
def WF(b, t): return 36 + 12*b + 4*t
def ACC(t, rg): return 160 + 32*t + 16*rg
def rng(a, n): return f"v[{a}:{a+n-1}]"

def compute_waves(p, cfg, T):
    p.I("""s_lshr_b32 s50, s3, 1
           s_and_b32 s51, s3, 1""")
    p.I(f"""s_cmp_lg_u32 s3, 0
            s_cbranch_scc1 L_C_NOINIT
            v_lshlrev_b32 v1, 2, v0
            v_add_u32 v1, {MISC}, v1
            v_cmp_eq_u32 vcc, 8, v0
            v_cndmask_b32 v2, 0, 2, vcc
            ds_write_b32 v1, v2
        L_C_NOINIT:""")
    epoch_tag(p)
    p.I("s_barrier")
    p.I("""v_and_b32 v60, 31, v0
           v_lshrrev_b32 v61, 5, v0
           v_bfe_u32 v62, v0, 1, 3
           s_lshl_b32 s44, s50, 13
           v_lshlrev_b32 v63, 7, v60
           v_add_u32 v63, s44, v63""")
    for ks in range(4):
        p.I(f"""v_add_u32 v64, {2*ks}, v61
                v_xor_b32 v64, v64, v62
                v_lshlrev_b32 v64, 4, v64
                v_add_u32 v{VXA[ks]}, v63, v64""")
    p.I(f"""v_bfe_u32 v64, v0, 2, 2
            v_lshl_add_u32 v65, v61, 3, v64
            v_lshlrev_b32 v65, 7, v65
            v_lshrrev_b32 v66, 1, v64
            v_xor_b32 v66, s51, v66
            v_lshl_add_u32 v65, v66, 6, v65
            v_bfe_u32 v66, v0, 4, 1
            v_lshl_add_u32 v65, v66, 5, v65
            v_and_b32 v66, 3, v0
            v_lshl_add_u32 v65, v66, 3, v65
            v_add_u32 v{VWA}, 16384, v65
            v_lshl_add_u32 v65, v61, 3, v64
            v_lshlrev_b32 v65, 8, v65
            v_xor_b32 v66, s51, v64
            v_lshl_add_u32 v65, v66, 6, v65
            v_bfe_u32 v66, v0, 4, 1
            v_lshl_add_u32 v65, v66, 5, v65
            v_and_b32 v66, 3, v0
            v_lshl_add_u32 v65, v66, 3, v65
            v_add_u32 v{VWB[0]}, {16384 + 8192}, v65
            v_xor_b32 v{VWB[1]}, 128, v{VWB[0]}
            v_mov_b32 v{VFA}, {MISC}
            v_mov_b32 v9, 1
            s_mov_b32 s52, 0x3f803f80""")
    for r in range(160, 256): p.I(f"v_mov_b32 v{r}, 0")
    p.I(f"""v_and_b32 v60, 31, v0
            v_lshlrev_b32 v60, 1, v60
            s_cmp_eq_u32 s6, 0
            s_cbranch_scc0 L_C_B1B
            s_lshl_b32 s53, s5, 1
            s_add_u32 s54, s53, s51
            s_mov_b32 s53, 64
            s_branch L_C_B1D
        L_C_B1B:
            s_sub_u32 s53, s5, 8
            s_lshl_b32 s53, s53, 2
            s_add_u32 s53, s53, 16
            s_add_u32 s53, s53, s51
            s_add_u32 s54, s53, 2
        L_C_B1D:""")
    T.stamp(p, 1)
    p.I("""s_cmp_eq_u32 s6, 0
           s_cbranch_scc0 L_TYPEB""")
    main_loop(p, cfg, T, 'A')
    T.stamp(p, 3)
    stats(p, cfg, 'A')
    T.stamp(p, 4)
    epilogue_A(p, cfg, T)
    p.L('L_TYPEB')
    main_loop(p, cfg, T, 'B')
    T.stamp(p, 3)
    stats(p, cfg, 'B')
    T.stamp(p, 4)
    epilogue_B(p, cfg, T)

def frag_reads(ks, b, ty='A'):
    def X(rg): return f"ds_read_b128 {rng(XF(b, rg), 4)}, v{VXA[ks]} offset:{rg*4096}"
    def W(t, h):
        if ty == 'B' and t >= 1: return f"ds_read_b64_tr_b16 {rng(WF(b, t)+2*h, 2)}, v{VWB[t-1]} offset:{ks*4096 + h*1024}"
        return f"ds_read_b64_tr_b16 {rng(WF(b, t)+2*h, 2)}, v{VWA} offset:{t*8192 + ks*2048 + h*512}"
    return [X(0), W(0, 0), W(0, 1), X(1), W(1, 0), W(1, 1), W(2, 0), W(2, 1)]

def main_loop(p, cfg, T, ty):
    tr = {'A': [False, False, True], 'B': [True, True, True]}[ty]
    spin_lds_ge(p, f'L_{ty}_F0', f'v{VFA}', 0, 2)
    T.stamp(p, 2)
    p.I("s_waitcnt lgkmcnt(0)")
    for x in frag_reads(0, 0, ty): p.I(x)
    p.I(f"""v_mov_b32 v60, {L_FUB}
           s_mov_b32 s57, 0
           s_mov_b32 s58, 0
           s_mov_b32 s48, {(-2*SLOT) & 0xffffffff}
           s_mov_b32 s49, {SLOT}""")
    p.L(f'L_{ty}_LOOP')
    q = [('F', 0, n) for n in range(8)]
    def wait(item):
        if item not in q: return
        k = q.index(item)
        p.I(f"s_waitcnt lgkmcnt({len(q) - 1 - k})")
        del q[:k + 1]
    needs = {0: 2, 1: 3, 2: 5, 3: 5, 4: 7, 5: 7}
    order = [(t, rg) for t in range(3) for rg in range(2)]
    for ks in range(4):
        b = ks & 1; nb = b ^ 1
        nks = (ks + 1) & 3
        rd = frag_reads(nks, nb, ty)
        fill = {m: [] for m in range(6)}
        for n, x in enumerate(rd): fill[n // 2].append((x, ('F', nks, n)))
        pre = []
        if ks == 0 and cfg.twolevel:
            fill[cfg.flagpos].insert(0, ("ds_read_b32 v61, v60", ('FB',)))
            fill[5].append(("@waitFB", None))
            fill[5].append(("v_readfirstlane_b32 s44, v61", None))
            fill[5].append(("@checkb", None))
        if ks == 1:
            fill[4].append((f"s_lshl_b32 s59, s57, 2", None))
            fill[4].append((f"v_add_u32 v63, s59, v{VFA}", None))
        if ks == 2:
            fill[cfg.flagpos].insert(0, (f"ds_read_b32 v{VFL}, v63 offset:4", ('FL',)))
            fill[4].append((f"s_cmp_eq_u32 s58, 2", None))
            fill[4].append((f"s_cselect_b32 s59, s48, s49", None))
            fill[5].append(("@waitFL", None))
            fill[5].append((f"v_readfirstlane_b32 s44, v{VFL}", None))
            fill[5].append(("@checkfull", None))
        if ks == 3:
            pre = [f"v_add_u32 v{VXA[0]}, s59, v{VXA[0]}", f"v_add_u32 v{VWA}, s59, v{VWA}"]
            if ty == 'B': pre += [f"v_add_u32 v{r}, s59, v{r}" for r in VWB]
            fill[1].append((f"v_add_u32 v{VXA[1]}, s59, v{VXA[1]}", None))
            fill[2].append((f"v_add_u32 v{VXA[2]}, s59, v{VXA[2]}", None))
            fill[3].append((f"v_add_u32 v{VXA[3]}, s59, v{VXA[3]}", None))
            fill[cfg.freepos].append(("@free", None))
            fill[4].append(("v_add_u32 v60, 4, v60", None))
            fill[5].append(("s_add_u32 s58, s58, 1", None))
            fill[5].append(("s_cmp_eq_u32 s58, 3", None))
            fill[5].append(("s_cselect_b32 s58, 0, s58", None))
        for x in pre: p.I(x)
        for m, (t, rg) in enumerate(order):
            wait(('F', ks, needs[m]))
            a = ACC(t, rg)
            if tr[t]: p.I(f"v_mfma_f32_32x32x16_bf16 {rng(a,16)}, {rng(WF(b,t),4)}, {rng(XF(b,rg),4)}, {rng(a,16)}")
            else:     p.I(f"v_mfma_f32_32x32x16_bf16 {rng(a,16)}, {rng(XF(b,rg),4)}, {rng(WF(b,t),4)}, {rng(a,16)}")
            for x, item in fill[m]:
                if x == "@waitFL": wait(('FL',)); continue
                if x == "@waitFB": wait(('FB',)); continue
                if x == "@checkb":
                    p.I(f"""s_cmp_ge_u32 s44, {0 if cfg.nosync else 2}
                            s_cbranch_scc1 L_{ty}_BOK""")
                    spin_lds_ge(p, f'L_{ty}_BS', 'v60', 0, 2, vt='v61')
                    p.L(f'L_{ty}_BOK')
                    continue
                if x == "@checkfull":
                    if cfg.cntspin: p.I("s_mov_b32 s45, 0")
                    p.I(f"""s_cmp_ge_u32 s44, {0 if cfg.nosync else 2}
                            s_cbranch_scc1 L_{ty}_FOK
                            v_add_u32 v1, 4, v63""")
                    spin_lds_ge(p, f'L_{ty}_FS', 'v1', 0, 2, vt=f'v{VFL}')
                    p.L(f'L_{ty}_FOK')
                    if cfg.cntspin:
                        p.I("""s_mov_b32 m0, s57
                               v_writelane_b32 v19, s45, m0""")
                    elif cfg.tschunk:
                        p.I(f"""{'s_memtime' if cfg.tscyc else 's_memrealtime'} s[46:47]
                               s_waitcnt lgkmcnt(0)
                               s_mov_b32 m0, s57
                               v_writelane_b32 v19, s46, m0""")
                    continue
                if x == "@free":
                    wait(('F', ks, 7))
                    p.I(f"""s_mov_b64 exec, 1
                            ds_add_u32 v63, v9 offset:64
                            s_mov_b64 exec, -1""")
                    q.append(('FREE',))
                    continue
                p.I(x)
                if item is not None: q.append(item)
    p.C(f"queue at back-edge: {q}")
    p.I(f"""s_add_u32 s57, s57, 1
            s_cmp_lt_u32 s57, 8
            s_cbranch_scc1 L_{ty}_LOOP
            s_waitcnt lgkmcnt(0)""")
    main_loop.q_end = list(q)
    if cfg.tschunk:
        p.I(f"""s_lshl_b32 s44, s2, 8
               s_lshl_b32 s45, s3, 5
               s_add_u32 s44, s44, s45
               s_add_u32 s44, s44, {WS_DBG + 64}
               v_lshlrev_b32 v21, 2, v0
               s_mov_b64 exec, 0xff
               buffer_store_dword v19, v21, s[28:31], s44 offen
               s_mov_b64 exec, -1""")

def half_sum(p, r, t):
    p.I(f"""v_mov_b32 v{t}, v{r}
            v_permlane32_swap_b32 v{r}, v{t}
            v_add_f32 v{r}, v{r}, v{t}""")

MEAN = [60, 61]; STD = [62, 64]; RSTD = [66, 68]
ROWF = [72, 76]
COLF = [80, 84, 88]

def stats(p, cfg, ty):
    for rg in range(2):
        for k in range(4): p.I(f"v_mov_b32 v{ROWF[rg]+k}, 0")
    p.I(f"""v_and_b32 v20, 31, v0
            s_lshl_b32 s44, s50, 10
            s_add_u32 s44, s44, {L_RF}
            v_lshl_add_u32 v21, v20, 4, s44
            s_lshl_b32 s45, s51, 9
            s_add_u32 s45, s45, {L_CF}
            v_lshl_add_u32 v22, v20, 4, s45
            s_lshl_b32 s46, s50, 9
            s_add_u32 s46, s46, {L_ST}
            v_lshl_add_u32 v23, v20, 3, s46""")
    spin_lds_ge(p, f'L_{ty}_ST', f'v{VFA}', L_STAT - MISC, 1)
    p.I(f"""ds_read_b128 {rng(COLF[0],4)}, v22
            ds_read_b128 {rng(COLF[1],4)}, v22 offset:1024
            ds_read_b128 {rng(COLF[2],4)}, v22 offset:2048
            ds_read_b64 v[24:25], v23
            ds_read_b64 v[26:27], v23 offset:256
            s_mov_b64 exec, 0xffffffff
            ds_read_b128 {rng(ROWF[0],4)}, v21
            ds_read_b128 {rng(ROWF[1],4)}, v21 offset:512
            s_mov_b64 exec, -1
            s_waitcnt lgkmcnt(0)
            v_mov_b32 v{STD[0]}, v24
            v_mov_b32 v{RSTD[0]}, v25
            v_mov_b32 v{STD[1]}, v26
            v_mov_b32 v{RSTD[1]}, v27""")
    tr = {'A': [False, False, True], 'B': [True, True, True]}[ty]
    for t in range(3):
        for rg in range(2):
            a = ACC(t, rg)
            if tr[t]: p.I(f"v_mfma_f32_32x32x16_bf16 {rng(a,16)}, {rng(COLF[t],4)}, {rng(ROWF[rg],4)}, {rng(a,16)}")
            else:     p.I(f"v_mfma_f32_32x32x16_bf16 {rng(a,16)}, {rng(ROWF[rg],4)}, {rng(COLF[t],4)}, {rng(a,16)}")

K1 = -2.0 * 1.4426950408889634 * 0.7978845608028654
K2 = K1 * 0.044715
import struct
def fhex(x): return '0x%08x' % struct.unpack('<I', struct.pack('<f', x))[0]

def gelu_tile(p, acc, rg, out, tmp):
    A1, A2, SD = GA1[rg], GA2[rg], STD[rg]
    for h in range(2):
        prs = [acc + 8*h + 2*k for k in range(4)]
        q = [tmp + 2*k for k in range(4)]; e = [tmp + 8 + 2*k for k in range(4)]
        for k in range(4): p.I(f"v_pk_mul_f32 v[{q[k]}:{q[k]+1}], v[{prs[k]}:{prs[k]+1}], v[{prs[k]}:{prs[k]+1}]")
        for k in range(4): p.I(f"v_pk_fma_f32 v[{q[k]}:{q[k]+1}], v[{q[k]}:{q[k]+1}], v[{A2}:{A2+1}], v[{A1}:{A1+1}] op_sel_hi:[1,0,0]")
        for k in range(4): p.I(f"v_pk_mul_f32 v[{q[k]}:{q[k]+1}], v[{q[k]}:{q[k]+1}], v[{prs[k]}:{prs[k]+1}]")
        for k in range(4):
            p.I(f"v_exp_f32 v{e[k]}, v{q[k]}")
            p.I(f"v_exp_f32 v{e[k]+1}, v{q[k]+1}")
        for k in range(4): p.I(f"v_pk_fma_f32 v[{e[k]}:{e[k]+1}], v[{e[k]}:{e[k]+1}], v[{SD}:{SD+1}], v[{SD}:{SD+1}] op_sel_hi:[1,0,0]")
        for k in range(4):
            p.I(f"v_rcp_f32 v{e[k]}, v{e[k]}")
            p.I(f"v_rcp_f32 v{e[k]+1}, v{e[k]+1}")
        for k in range(4): p.I(f"v_pk_mul_f32 v[{e[k]}:{e[k]+1}], v[{e[k]}:{e[k]+1}], v[{prs[k]}:{prs[k]+1}]")
        for k in range(4): p.I(f"v_cvt_pk_bf16_f32 v{out+4*h+k}, v{e[k]}, v{e[k]+1}")

GA1 = [92, 94]; GA2 = [96, 98]; QA = [100, 102]
LOG2E = 1.4426950408889634

def lane_consts(p):
    p.I(f"""s_mov_b32 s44, {fhex(K1)}
            s_mov_b32 s45, {fhex(K2)}
            s_mov_b32 s46, {fhex(LOG2E)}""")
    for rg in range(2):
        rs = RSTD[rg]
        p.I(f"""v_mul_f32 v{GA1[rg]}, s44, v{rs}
                v_mul_f32 v24, v{rs}, v{rs}
                v_mul_f32 v24, v24, v{rs}
                v_mul_f32 v{GA2[rg]}, s45, v24
                v_mul_f32 v{QA[rg]}, s46, v{rs}""")

def phi_tile_T(p, acc, rg, out, tmp):
    rs, qa = RSTD[rg], QA[rg]
    for h in range(2):
        prs = [acc + 8*h + 2*k for k in range(4)]
        t = [tmp + 2*k for k in range(4)]; y = [tmp + 8 + 2*k for k in range(4)]
        for k in range(4): p.I(f"v_pk_mul_f32 v[{t[k]}:{t[k]+1}], v[{prs[k]}:{prs[k]+1}], v[{qa}:{qa+1}] op_sel_hi:[1,0]")
        for k in range(4): p.I(f"v_pk_fma_f32 v[{y[k]}:{y[k]+1}], v[{prs[k]}:{prs[k]+1}], v[{rs}:{rs+1}], v[104:105] op_sel_hi:[1,0,0]")
        for k in range(4):
            p.I(f"v_exp_f32_e64 v{t[k]}, v{t[k]} clamp")
            p.I(f"v_exp_f32_e64 v{t[k]+1}, v{t[k]+1} clamp")
        for k in range(4):
            p.I(f"v_max_f32 v{y[k]}, v{y[k]}, v104")
            p.I(f"v_max_f32 v{y[k]+1}, v{y[k]+1}, v104")
        for k in range(4): p.I(f"v_pk_add_f32 v[{t[k]}:{t[k]+1}], v[{t[k]}:{t[k]+1}], v[{y[k]}:{y[k]+1}]")
        for k in range(4): p.I(f"v_cvt_pk_bf16_f32 v{out+4*h+k}, v{t[k]}, v{t[k]+1}")

def store_frags(p, out, sbase, rg, nstores):
    for u in range(2):
        p.I(f"buffer_store_dwordx4 {rng(out+4*u,4)}, v105, s[28:31], {sbase} offen offset:{u*2048 + rg*1024} sc1")
    return nstores + 2

def h_base(p, sreg, tile_sreg):
    p.I(f"""s_mul_i32 {sreg}, s60, {HF_IB}
            s_lshl_b32 s44, {tile_sreg}, 12
            s_add_u32 {sreg}, {sreg}, s44
            s_add_u32 {sreg}, {sreg}, {WS_HF}""")

def f1_flag(p, name):
    p.I(f"""s_lshl_b32 s44, s60, 5
            s_lshl_b32 s45, s5, 1
            s_add_u32 s44, s44, s45
            s_add_u32 s44, s44, s51
            s_mul_i32 s44, s44, {FS}
            s_add_u32 s44, s44, {WS_F1}""")
    write_flag(p, 's44')

def epi_common(p):
    lane_consts(p)
    p.I(f"""v_mov_b32 v104, {fhex(1e-6)}
            v_lshlrev_b32 v105, 4, v0
            s_lshl_b32 s60, s4, 1
            s_add_u32 s60, s60, s50""")

def epilogue_B(p, cfg, T):
    epi_common(p)
    OUT = [[108, 116], [124, 132]]
    for t in (1, 2):
        tile = 's53' if t == 1 else 's54'
        p.I(f"""s_cmp_lt_u32 {tile}, 43
                s_cbranch_scc0 L_B_SKIP{t}""")
        h_base(p, 's61', tile)
        for rg in range(2):
            o = OUT[t & 1][rg]
            gelu_tile(p, ACC(t, rg), rg, o, 140)
            store_frags(p, o, 's61', rg, 0)
        p.L(f'L_B_SKIP{t}')
    p.I(f"""s_sub_u32 s61, s5, 8
            s_lshl_b32 s61, s61, 2
            s_lshl_b32 s44, s51, 1
            s_add_u32 s61, s61, s44
            s_lshl_b32 s61, s61, 11
            s_mul_i32 s44, s60, {PQ_IB}
            s_add_u32 s61, s61, s44
            s_add_u32 s61, s61, {WS_PQ}""")
    for rg in range(2):
        phi_tile_T(p, ACC(0, rg), rg, OUT[0][rg], 140)
        store_frags(p, OUT[0][rg], 's61', rg, 0)
    T.stamp(p, 5)
    lds_inc(p, f'v{VFA}', L_EPI - MISC)
    p.I("s_waitcnt vmcnt(4)")
    T.stamp(p, 6)
    f1_flag(p, 'B')
    p.I(f"""s_waitcnt vmcnt(1)
            s_lshl_b32 s44, s60, 4
            s_sub_u32 s45, s5, 8
            s_lshl_b32 s45, s45, 1
            s_add_u32 s44, s44, s45
            s_add_u32 s44, s44, s51
            s_mul_i32 s44, s44, {FS}
            s_add_u32 s44, s44, {WS_F2}""")
    write_flag(p, 's44')
    T.stamp(p, 7)
    dump_ts(p, cfg, T, 8)
    p.I("s_endpgm")

def epilogue_A(p, cfg, T):
    epi_common(p)
    p.I(f"""s_lshl_b32 s44, s50, 8
            s_add_u32 s44, s44, {L_RSTD}
            v_lshrrev_b32 v22, 5, v0
            v_lshl_add_u32 v22, v22, 4, s44""")
    RB = [108, 124]
    for rg in range(2):
        for g in range(4):
            p.I(f"ds_read_b128 {rng(RB[rg]+4*g,4)}, v22 offset:{rg*128 + g*32}")
    p.I(f"""s_mov_b32 s44, {fhex(LOG2E)}
            v_mov_b32 v106, s44
            s_waitcnt lgkmcnt(0)""")
    KP = [20, 28]; VP = [36, 44]
    tmp = 140
    for rg in range(2):
        a = ACC(0, rg); rb = RB[rg]
        for h in range(2):
            prs = [a + 8*h + 2*k for k in range(4)]; rr = [rb + 8*h + 2*k for k in range(4)]
            y = [tmp + 2*k for k in range(4)]; t = [tmp + 8 + 2*k for k in range(4)]
            for k in range(4): p.I(f"v_pk_mul_f32 v[{y[k]}:{y[k]+1}], v[{prs[k]}:{prs[k]+1}], v[{rr[k]}:{rr[k]+1}]")
            for k in range(4): p.I(f"v_pk_mul_f32 v[{t[k]}:{t[k]+1}], v[{y[k]}:{y[k]+1}], v[106:107] op_sel_hi:[1,0]")
            for k in range(4):
                p.I(f"v_exp_f32_e64 v{t[k]}, v{t[k]} clamp")
                p.I(f"v_exp_f32_e64 v{t[k]+1}, v{t[k]+1} clamp")
            for k in range(4): p.I(f"v_pk_add_f32 v[{y[k]}:{y[k]+1}], v[{y[k]}:{y[k]+1}], v[104:105] op_sel_hi:[1,0]")
            for k in range(4):
                p.I(f"v_max_f32 v{y[k]}, v{y[k]}, v104")
                p.I(f"v_max_f32 v{y[k]+1}, v{y[k]+1}, v104")
            for k in range(4): p.I(f"v_pk_add_f32 v[{t[k]}:{t[k]+1}], v[{t[k]}:{t[k]+1}], v[{y[k]}:{y[k]+1}]")
            for k in range(4): p.I(f"v_cvt_pk_bf16_f32 v{KP[rg]+4*h+k}, v{t[k]}, v{t[k]+1}")
        a = ACC(1, rg)
        for k in range(8):
            p.I(f"v_pk_mul_f32 v[{tmp+2*(k%4)}:{tmp+2*(k%4)+1}], v[{a+2*k}:{a+2*k+1}], v[{rb+2*k}:{rb+2*k+1}]")
            p.I(f"v_cvt_pk_bf16_f32 v{VP[rg]+k}, v{tmp+2*(k%4)}, v{tmp+2*(k%4)+1}")
    for r in range(52, 56): p.I(f"v_mov_b32 v{r}, s52")
    KV = ACC(0, 0); ZZ = ACC(0, 1)
    first = True
    for rg in range(2):
        for t in range(2):
            c1 = '0' if first else rng(KV, 16); c2 = '0' if first else rng(ZZ, 16)
            p.I(f"v_mfma_f32_32x32x16_bf16 {rng(KV,16)}, {rng(KP[rg]+4*t,4)}, {rng(VP[rg]+4*t,4)}, {c1}")
            p.I(f"v_mfma_f32_32x32x16_bf16 {rng(ZZ,16)}, {rng(KP[rg]+4*t,4)}, v[52:55], {c2}")
            first = False
    p.I("""v_and_b32 v56, 16, v0
           v_cmp_ne_u32 vcc, 0, v56""")
    GK = 124; GZ = 36
    GZ = 140
    for g in range(2):
        for half in range(2):
            a = GK + 8*g + 4*half; z = GZ + 8*g + 4*half
            for k in range(2):
                i_ = 2*half + k
                p.I(f"v_cndmask_b32 v{a+k}, v{KV+4*g+i_}, v{KV+8+4*g+i_}, vcc")
                p.I(f"v_cndmask_b32 v{z+k}, v{ZZ+4*g+i_}, v{ZZ+8+4*g+i_}, vcc")
            p.I(f"""v_mov_b32 v{a+2}, s42
                    v_mov_b32 v{a+3}, s43
                    v_mov_b32 v{z+2}, s42
                    v_mov_b32 v{z+3}, s43""")
    p.I(f"""s_lshl_b32 s62, s5, 2
            s_lshl_b32 s44, s51, 1
            s_add_u32 s62, s62, s44
            s_lshl_b32 s44, s62, 16
            s_lshl_b32 s45, s60, 11
            s_add_u32 s44, s44, s45
            s_add_u32 s44, s44, {WS_KVP}
            v_bfe_u32 v56, v0, 4, 1
            v_lshlrev_b32 v57, 16, v56
            v_lshrrev_b32 v58, 5, v0
            v_lshl_add_u32 v57, v58, 9, v57
            v_and_b32 v59, 15, v0
            v_lshl_add_u32 v57, v59, 4, v57""")
    for g in range(2):
        for half in range(2):
            p.I(f"buffer_store_dwordx4 {rng(GK + 8*g + 4*half, 4)}, v57, s[28:31], s44 offen offset:{g*1024 + half*256} sc1")
    p.I(f"""s_lshl_b32 s45, s62, 12
            s_lshl_b32 s46, s60, 4
            s_add_u32 s45, s45, s46
            s_add_u32 s45, s45, {WS_ZP}
            v_lshlrev_b32 v57, 12, v56
            v_lshl_add_u32 v57, v58, 10, v57
            s_mov_b32 exec_lo, 0x00010001
            s_mov_b32 exec_hi, 0x00010001""")
    for g in range(2):
        for half in range(2):
            p.I(f"buffer_store_dwordx4 {rng(GZ + 8*g + 4*half, 4)}, v57, s[28:31], s45 offen offset:{g*2048 + half*512} sc1")
    p.I("s_mov_b64 exec, -1")
    h_base(p, 's61', 's54')
    OUT = [108, 116]
    for rg in range(2):
        gelu_tile(p, ACC(2, rg), rg, OUT[rg], 20)
        store_frags(p, OUT[rg], 's61', rg, 0)
    T.stamp(p, 5)
    lds_inc(p, f'v{VFA}', L_EPI - MISC)
    p.I("""s_cmp_eq_u32 s3, 0
           s_cbranch_scc0 L_A_NORED""")
    reducer(p, cfg)
    p.I("s_branch L_A_DONE")
    p.L('L_A_NORED')
    p.I("s_waitcnt vmcnt(0)")
    T.stamp(p, 6)
    f1_flag(p, 'A')
    p.I("""s_cmp_eq_u32 s3, 1
           s_cbranch_scc0 L_A_DONE
           s_cmp_eq_u32 s2, 0
           s_cbranch_scc0 L_A_DONE""")
    p.I(f"""v_mul_u32_u24 v20, {FS}, v0
            s_mov_b32 s48, 0
        L_EP_RETRY:
            s_mov_b32 s44, {WS_F1}""")
    for k in range(16):
        p.I(f"""buffer_load_dwordx2 v[{64+2*k}:{65+2*k}], v20, s[28:31], s44 offen sc1
                s_add_u32 s44, s44, {64*FS}""")
    p.I("s_waitcnt vmcnt(0)\n v_mov_b32 v22, 0")
    for k in range(16):
        p.I(f"""v_xor_b32 v23, s42, v{64+2*k}
                v_or_b32 v22, v22, v23
                v_xor_b32 v23, s43, v{65+2*k}
                v_or_b32 v22, v22, v23""")
    p.I(f"""v_cmp_ne_u32 vcc, 0, v22
            s_add_u32 s48, s48, 1
            s_cmp_eq_u64 vcc, 0
            s_cbranch_scc1 L_EP_OK
            s_cmp_ge_u32 s48, {SPIN_MAX >> 5}
            s_cbranch_scc1 L_EP_OK
            s_sleep 8
            s_branch L_EP_RETRY
        L_EP_OK:""")
    p.I("""s_mov_b32 s44, 0""")
    write_flag(p, 's44')
    p.L('L_A_DONE')
    T.stamp(p, 7)
    dump_ts(p, cfg, T, 8)
    p.I("s_endpgm")

def helper_waves(p, cfg, T):
    p.I("s_sub_u32 s49, s3, 4")
    p.I("""s_cmp_lt_u32 s49, 2
           s_cbranch_scc0 L_H_NOTLOADER""")
    loader(p, cfg, T)
    p.I("s_branch L_H_B")
    p.L('L_H_NOTLOADER')
    epoch_tag(p)
    p.I("s_barrier")
    p.I(f"""v_mov_b32 v12, {MISC}
            v_mov_b32 v9, 1""")
    spin_lds_ge(p, 'L_H_F0', 'v12', 0, 2, sleep=cfg.slp_lds and 1)
    p.I("""s_cmp_eq_u32 s49, 2
           s_cbranch_scc0 L_H_COL""")
    stat_rows(p, cfg)
    T.stamp(p, 1)
    p.I("s_branch L_H_WI")
    p.L('L_H_COL')
    stat_cols(p, cfg)
    spin_lds_ge(p, 'L_H_ISS7', 'v12', L_GISS - MISC, 1, sleep=cfg.slp_lds)
    T.stamp(p, 1)
    p.L('L_H_WI')
    if cfg.biss: spin_lds_ge(p, 'L_H_ISSW', 'v12', L_ISS - MISC, 2)
    p.L('L_H_B')
    phase2(p, cfg, T)

def stat_rows(p, cfg):
    p.I("""v_bfe_u32 v10, v0, 1, 3
           v_lshlrev_b32 v10, 4, v10
           v_lshl_add_u32 v10, v0, 7, v10""")
    for c in range(8):
        p.I(f"v_xor_b32 v11, {c << 4}, v10")
        p.I(f"ds_read_b128 {rng(16 + 4*c, 4)}, v11")
        p.I(f"ds_read_b128 {rng(48 + 4*c, 4)}, v11 offset:8192")
        if c == 5: p.I("s_waitcnt lgkmcnt(6)")
    p.I("s_waitcnt lgkmcnt(0)")
    lds_inc(p, 'v12', L_FREE - MISC)
    p.I("s_mov_b32 s46, 0xffff0000")
    for r in range(2):
        base = 16 + 32*r; a = 80 + 4*r
        for k in range(4): p.I(f"v_mov_b32 v{a+k}, 0")
    for d in range(32):
        for r in range(2):
            base = 16 + 32*r; a = 80 + 4*r; t = 88 + 2*r
            p.I(f"""v_lshlrev_b32 v{t}, 16, v{base+d}
                    v_and_b32 v{t+1}, s46, v{base+d}
                    v_add_f32 v{a}, v{a}, v{t}
                    v_add_f32 v{a+1}, v{a+1}, v{t+1}
                    v_fmac_f32 v{a+2}, v{t}, v{t}
                    v_fmac_f32 v{a+3}, v{t+1}, v{t+1}""")
    for r in range(2):
        a = 80 + 4*r; g = 92 + 4*r
        p.I(f"""v_add_f32 v{g}, v{a}, v{a+1}
                v_add_f32 v{g+1}, v{a+2}, v{a+3}
                v_mov_b32 v{g+2}, s42
                v_mov_b32 v{g+3}, s43""")
    p.I(f"""s_and_b32 s44, s2, 3
            s_cmp_lt_u32 s44, 2
            s_cbranch_scc0 L_SR_NOPUB
            s_lshl_b32 s44, s4, 3
            s_add_u32 s44, s44, s7
            s_lshl_b32 s44, s44, 11
            s_add_u32 s44, s44, {WS_RP}
            v_lshlrev_b32 v11, 4, v0
            buffer_store_dwordx4 v[92:95], v11, s[28:31], s44 offen sc1
            buffer_store_dwordx4 v[96:99], v11, s[28:31], s44 offen offset:1024 sc1
        L_SR_NOPUB:""")
    srd(p, 36, 74, 2752)
    p.I(f"""v_and_b32 v10, 31, v0
            v_lshlrev_b32 v10, 1, v10
            v_lshrrev_b32 v13, 5, v0
            v_mul_u32_u24 v13, 3, v13
            s_cmp_eq_u32 s6, 0
            s_cbranch_scc0 L_SR_TB
            s_lshl_b32 s44, s5, 1
            s_sub_u32 s44, s44, 4
            s_mov_b32 s45, 4
            s_branch L_SR_TD
        L_SR_TB:
            s_sub_u32 s44, s5, 8
            s_lshl_b32 s44, s44, 2
            s_add_u32 s44, s44, 14
            s_mov_b32 s45, 2
        L_SR_TD:""")
    p.I("v_mov_b32 v45, 0x7ffffff0")
    for k in range(3):
        p.I(f"""v_add_u32 v14, {k}, v13
                v_cmp_le_u32 vcc, s45, v14
                v_add_u32 v14, s44, v14
                v_lshl_add_u32 v14, v14, 6, v10
                v_cndmask_b32 v14, v45, v14, vcc
                buffer_load_ushort v{112+k}, v14, s[36:39], 0 offen""")
    spin_lds_ge(p, 'L_SR_ISS', 'v12', L_G0 - MISC, 1, sleep=cfg.slp_lds)
    p.I(f"""s_mov_b32 s48, 0
            v_lshlrev_b32 v11, 4, v0
        L_SR_RETRY:
            s_lshl_b32 s44, s4, 14
            s_add_u32 s44, s44, {WS_RP}
            s_lshl_b32 s45, s5, 13
            s_add_u32 s45, s45, {WS_CP}""")
    for cc in range(8):
        p.I(f"""buffer_load_dwordx4 {rng(16 + 8*cc, 4)}, v11, s[28:31], s44 offen sc1
                buffer_load_dwordx4 {rng(20 + 8*cc, 4)}, v11, s[28:31], s44 offen offset:1024 sc1
                buffer_load_dwordx4 {rng(80 + 4*cc, 4)}, v11, s[28:31], s45 offen sc1
                s_add_u32 s44, s44, 2048
                s_add_u32 s45, s45, 1024""")
    lds_inc(p, 'v12', L_GISS - MISC)
    p.I("s_waitcnt vmcnt(0)")
    first = True
    for cc in range(8):
        for (r2, sg) in ((16 + 8*cc + 2, 's42'), (16 + 8*cc + 3, 's43'), (20 + 8*cc + 2, 's42'), (20 + 8*cc + 3, 's43'), (80 + 4*cc + 3, 's42')):
            if first:
                p.I(f"v_xor_b32 v10, {sg}, v{r2}"); first = False
            else:
                p.I(f"""v_xor_b32 v13, {sg}, v{r2}
                        v_or_b32 v10, v10, v13""")
    p.I(f"""v_cmp_ne_u32 vcc, 0, v10
            s_add_u32 s48, s48, 1
            s_cmp_eq_u64 vcc, 0
            s_cbranch_scc1 L_SR_OK
            s_cmp_ge_u32 s48, {SPIN_MAX >> 5}
            s_cbranch_scc1 L_SR_OK
            s_sleep 2
            s_branch L_SR_RETRY
        L_SR_OK:""")
    for cc in range(1, 8):
        for r in range(2):
            p.I(f"""v_add_f32 v{16+4*r}, v{16+4*r}, v{16+8*cc+4*r}
                    v_add_f32 v{17+4*r}, v{17+4*r}, v{17+8*cc+4*r}""")
        for k in range(3): p.I(f"v_add_f32 v{80+k}, v{80+k}, v{80+4*cc+k}")
    p.I("""s_mov_b32 s44, 0x3b000000
           s_mov_b32 s45, 0x3727c5ac""")
    p.I("s_mov_b32 s46, 0xffff0000")
    for r in range(2):
        b = 16 + 4*r; f = 24 + 4*r; st = 32 + 2*r
        p.I(f"""v_mul_f32 v40, s44, v{b}
                v_mul_f32 v13, s44, v{b+1}
                v_fma_f32 v13, -v40, v40, v13
                v_max_f32 v13, 0, v13
                v_add_f32 v13, s45, v13
                v_sqrt_f32 v{st}, v13
                v_rsq_f32 v{st+1}, v13
                v_sub_f32 v41, 0, v40
                v_cvt_pk_bf16_f32 v{f}, v41, v41
                v_and_b32 v42, s46, v{f}
                v_sub_f32 v42, v41, v42
                v_cvt_pk_bf16_f32 v{f+1}, v42, v{st}
                v_and_b32 v43, s46, v{f+1}
                v_sub_f32 v43, v{st}, v43
                v_mov_b32 v44, 0
                v_cvt_pk_bf16_f32 v{f+2}, v43, v44
                v_mov_b32 v{f+3}, 0""")
    for k in range(3):
        c = 80 + k; f = 48 + 4*k; b1 = 112 + k
        p.I(f"""v_cvt_pk_bf16_f32 v40, v{c}, v{c}
                v_and_b32 v41, s46, v40
                v_sub_f32 v42, v{c}, v41
                v_cvt_pk_bf16_f32 v{f}, v41, v42
                v_lshrrev_b32 v43, 16, v41
                v_lshl_or_b32 v{f+1}, v{b1}, 16, v43
                v_mov_b32 v{f+2}, v{b1}
                v_mov_b32 v{f+3}, 0""")
    p.I(f"""v_lshlrev_b32 v10, 4, v0
            v_add_u32 v10, {L_RF}, v10
            ds_write_b128 v10, v[24:27]
            ds_write_b128 v10, v[28:31] offset:1024
            v_lshlrev_b32 v10, 3, v0
            v_add_u32 v10, {L_ST}, v10
            ds_write_b64 v10, v[32:33]
            ds_write_b64 v10, v[34:35] offset:512
            v_lshlrev_b32 v10, 2, v0
            v_add_u32 v10, {L_RSTD}, v10
            ds_write_b32 v10, v33
            ds_write_b32 v10, v35 offset:256
            v_lshrrev_b32 v10, 5, v0
            v_mul_u32_u24 v10, 1536, v10
            v_and_b32 v11, 31, v0
            v_lshl_add_u32 v10, v11, 4, v10
            v_add_u32 v10, {L_CF}, v10
            ds_write_b128 v10, v[48:51]
            ds_write_b128 v10, v[52:55] offset:512
            ds_write_b128 v10, v[56:59] offset:1024
            s_waitcnt lgkmcnt(0)""")
    lds_inc(p, 'v12', L_STAT - MISC)

def stat_cols(p, cfg):
    p.I("""v_lshrrev_b32 v13, 5, v0
           v_bfe_u32 v14, v0, 2, 2
           v_lshl_add_u32 v10, v13, 3, v14
           v_lshlrev_b32 v10, 7, v10
           v_lshrrev_b32 v14, 1, v14
           v_lshl_add_u32 v10, v14, 6, v10
           v_bfe_u32 v14, v0, 4, 1
           v_lshl_add_u32 v10, v14, 5, v10
           v_and_b32 v14, 3, v0
           v_lshl_add_u32 v10, v14, 3, v10
           v_add_u32 v10, 16384, v10
           v_xor_b32 v11, 64, v10""")
    p.I(f"""v_lshrrev_b32 v13, 5, v0
            v_bfe_u32 v14, v0, 2, 2
            v_lshl_add_u32 v13, v13, 3, v14
            v_lshlrev_b32 v13, 8, v13
            v_lshl_add_u32 v13, v14, 6, v13
            v_bfe_u32 v14, v0, 4, 1
            v_lshl_add_u32 v13, v14, 5, v13
            v_and_b32 v14, 3, v0
            v_lshl_add_u32 v13, v14, 3, v13
            v_add_u32 v13, {16384 + 8192}, v13""")
    def tile_reads(T_, newl):
        for ks in range(4):
            d = 16 + 16*T_ + 4*ks
            if newl:
                p.I(f"ds_read_b64_tr_b16 {rng(d,2)}, v14 offset:{ks*4096}")
                p.I(f"ds_read_b64_tr_b16 {rng(d+2,2)}, v14 offset:{ks*4096+1024}")
            else:
                q_, half = T_ >> 1, T_ & 1
                o = q_*8192 + ks*2048
                p.I(f"ds_read_b64_tr_b16 {rng(d,2)}, v{10+half} offset:{o}")
                p.I(f"ds_read_b64_tr_b16 {rng(d+2,2)}, v{10+half} offset:{o+512}")
        p.I("s_waitcnt lgkmcnt(7)")
    tile_reads(0, False); tile_reads(1, False)
    p.I("""s_cmp_eq_u32 s6, 0
           s_cbranch_scc0 L_SC_TB""")
    for T_ in range(2, 6): tile_reads(T_, False)
    p.I("s_branch L_SC_TD")
    p.L('L_SC_TB')
    for T_ in range(2, 6):
        p.I(f"v_xor_b32 v14, {(T_-2) << 6}, v13")
        tile_reads(T_, True)
    p.L('L_SC_TD')
    p.I("s_waitcnt lgkmcnt(0)")
    lds_inc(p, 'v12', L_FREE - MISC)
    p.I("s_mov_b32 s46, 0xffff0000")
    for T_ in range(6):
        p.I(f"v_mov_b32 v{112+2*T_}, 0\n v_mov_b32 v{113+2*T_}, 0")
    for d in range(16):
        for T_ in range(6):
            x = 16 + 16*T_ + d; t = 124 + 2*(T_ & 1)
            p.I(f"""v_lshlrev_b32 v{t}, 16, v{x}
                    v_and_b32 v{t+1}, s46, v{x}
                    v_add_f32 v{112+2*T_}, v{112+2*T_}, v{t}
                    v_add_f32 v{113+2*T_}, v{113+2*T_}, v{t+1}""")
    for T_ in range(6):
        p.I(f"v_add_f32 v{112+2*T_}, v{112+2*T_}, v{113+2*T_}")
        half_sum(p, 112 + 2*T_, 1)
    p.I(f"""v_cmp_gt_u32 vcc, 32, v0
            v_cndmask_b32 v16, v118, v112, vcc
            v_cndmask_b32 v17, v120, v114, vcc
            v_cndmask_b32 v18, v122, v116, vcc
            v_mov_b32 v19, s42
            s_cmp_lt_u32 s4, 8
            s_cbranch_scc0 L_SC_NOPUB
            s_lshl_b32 s44, s5, 3
            s_add_u32 s44, s44, s7
            s_lshl_b32 s44, s44, 10
            s_add_u32 s44, s44, {WS_CP}
            v_lshlrev_b32 v11, 4, v0
            buffer_store_dwordx4 v[16:19], v11, s[28:31], s44 offen sc1
        L_SC_NOPUB:""")


def lds_inc(p, vaddr, off=0):
    p.I(f"""s_mov_b64 exec, 1
            ds_add_u32 {vaddr}, v9 offset:{off}
            s_mov_b64 exec, -1""")

def loader(p, cfg, T):
    srd(p, 8, 64, 2048*512*2)
    srd(p, 12, 66, 512*1536*2)
    srd(p, 16, 72, 512*1376*2)
    p.I("""s_cmp_eq_u32 s6, 0
           s_cselect_b32 s20, s12, s16
           s_cselect_b32 s21, s13, s17
           s_cselect_b32 s22, s14, s18
           s_mov_b32 s23, 0x20000""")
    p.I(f"""v_lshrrev_b32 v10, 3, v0
            v_and_b32 v11, 7, v0
            v_lshrrev_b32 v13, 4, v0
            v_xor_b32 v14, v11, v13
            v_lshlrev_b32 v14, 4, v14
            v_lshl_add_u32 v2, v10, 10, v14
            v_xor_b32 v3, 64, v2
            v_bfe_u32 v13, v0, 4, 1
            v_lshlrev_b32 v13, 2, v13
            v_xor_b32 v14, v11, v13
            v_lshlrev_b32 v14, 4, v14
            v_mul_u32_u24 v4, 3072, v10
            v_add_u32 v4, v4, v14
            v_mul_u32_u24 v5, 2752, v10
            v_add_u32 v5, v5, v14
            s_cmp_eq_u32 s6, 0
            s_cselect_b64 vcc, -1, 0
            v_cndmask_b32 v6, v5, v4, vcc
            v_lshrrev_b32 v10, 4, v0
            v_and_b32 v11, 15, v0
            v_lshlrev_b32 v13, 2, v10
            v_xor_b32 v11, v11, v13
            v_lshlrev_b32 v11, 4, v11
            v_mul_u32_u24 v7, 2752, v10
            v_add_u32 v7, v7, v11
            v_mov_b32 v12, {MISC}
            v_mov_b32 v9, 1""")
    p.I(f"""s_cmp_eq_u32 s6, 0
            s_cbranch_scc0 L_L_TB
            s_lshl_b32 s44, s5, 7
            s_add_u32 s52, s44, 1024
            s_add_u32 s53, s44, 2048
            s_mov_b32 s54, s44
            s_mov_b32 s55, {8*3072}
            s_mov_b32 s56, {64*3072}
            s_branch L_L_TD
        L_L_TB:
            s_sub_u32 s44, s5, 8
            s_lshl_b32 s52, s44, 7
            s_lshl_b32 s44, s44, 8
            s_add_u32 s53, s44, 1024
            s_add_u32 s54, s44, 1152
            s_mov_b32 s55, {8*2752}
            s_mov_b32 s56, {64*2752}
        L_L_TD:
            s_lshl_b32 s57, s4, 17
            s_mov_b32 s58, 0
            s_mov_b32 s59, 0""")
    half = 10
    def body(tag, pieces):
        nb = 4 if tag == 'X' else 8
        p.L(f'L_L{tag}_LOOP')
        p.I(f"""s_add_u32 s60, s58, s7
                s_and_b32 s60, s60, 7
                s_mov_b32 s51, 0
                s_cmp_lt_u32 s58, {99 if cfg.nosync else 3}
                s_cbranch_scc1 L_L{tag}_GO
                s_lshl_b32 s44, s58, 2
                s_add_u32 s44, s44, {L_FREE - 12}
                v_mov_b32 v13, s44
                ds_read_b32 v1, v13
                s_cmp_eq_u32 s58, 3
                s_cselect_b32 s47, 6, 4
                s_waitcnt lgkmcnt(0)
                v_readfirstlane_b32 s44, v1
                s_cmp_ge_u32 s44, s47
                s_cbranch_scc1 L_L{tag}_GO
                s_lshl_b32 s44, s58, 2
                s_add_u32 s44, s44, {L_FULL - 4}
                v_mov_b32 v14, s44
                s_mov_b32 s51, 1
                s_waitcnt vmcnt({nb if cfg.twolevel else 0})""")
        lds_inc(p, 'v14')
        p.I("s_waitcnt vmcnt(0)")
        lds_inc(p, 'v14', L_FUB - L_FULL)
        spin_lds_ge(p, f'L_L{tag}_FR', 'v13', 0, 's47')
        p.L(f'L_L{tag}_GO')
        if cfg.tschunk and tag == 'X':
            p.I("""s_memrealtime s[46:47]
                   s_waitcnt lgkmcnt(0)
                   s_mov_b32 m0, s58
                   v_writelane_b32 v20, s46, m0""")
        p.I(f"""s_lshl_b32 s61, s60, 7
                s_add_u32 s61, s61, s57
                s_mul_i32 s62, s60, {64*3072}
                s_add_u32 s62, s62, s52
                s_mul_i32 s63, s60, s56
                s_add_u32 s63, s63, s53
                s_mul_i32 s48, s60, {64*2752}
                s_add_u32 s48, s48, s54""")
        if tag == 'X': p.I(f"s_add_u32 s62, s62, {4*8*3072}")
        if tag == 'V': p.I(f"s_add_u32 s63, s63, {8*2752 - 4*2752}")
        for n, (lo, vr, S, ar, st) in enumerate(pieces):
            if n == half:
                p.I(f"""s_cmp_eq_u32 s58, 0
                        s_cbranch_scc1 L_L{tag}_NF
                        s_cmp_eq_u32 s51, 1
                        s_cbranch_scc1 L_L{tag}_NF
                        s_waitcnt vmcnt({half})
                        s_lshl_b32 s44, s58, 2
                        s_add_u32 s44, s44, {L_FULL - 4}
                        v_mov_b32 v14, s44""")
                lds_inc(p, 'v14')
                lds_inc(p, 'v14', L_FUB - L_FULL)
                p.L(f'L_L{tag}_NF')
            p.I(f"""s_add_u32 m0, s59, {lo}
                    s_mov_b32 s47, {ar}
                    s_add_u32 {ar}, {ar}, {st}
                    buffer_load_dwordx4 v{vr}, {S}, s47 offen lds""") if False else None
            p.I(f"s_add_u32 m0, s59, {lo}")
            p.I(f"s_add_u32 {ar}, {ar}, {st}")
            p.I(f"buffer_load_dwordx4 v{vr}, {S}, {ar} offen lds")
        if tag == 'X':
            p.I(f"s_cmp_eq_u32 s58, {cfg.g0chunk}\n s_cbranch_scc0 L_LX_NG0")
            lds_inc(p, 'v12', L_G0 - MISC)
            p.L('L_LX_NG0')
        p.I(f"""s_cmp_lg_u32 s58, 0
                s_cbranch_scc1 L_L{tag}_NB""")
        epoch_tag(p)
        p.I(f"""s_barrier
            L_L{tag}_NB:
                s_add_u32 s59, s59, {SLOT}
                s_cmp_eq_u32 s59, {3*SLOT}
                s_cselect_b32 s59, 0, s59
                s_add_u32 s58, s58, 1
                s_cmp_lt_u32 s58, 8
                s_cbranch_scc1 L_L{tag}_LOOP""")
    px = [(pc*1024, 2 + (pc & 1), 's[8:11]', 's61', 8192) for pc in range(16)] + \
         [(16384 + g*1024, 4, 's[12:15]', 's62', 8*3072) for g in range(4, 8)]
    pw = []
    for g in range(8):
        if g < 4: pw.append((16384 + g*1024, 4, 's[12:15]', 's62', 8*3072))
        pw.append((16384 + 8192 + g*1024, 6, 's[20:23]', 's63', 's55'))
        pw.append((16384 + 16384 + g*1024, 5, 's[16:19]', 's48', 8*2752))
    p.I(f"""s_sub_u32 s57, s57, 8192
            s_sub_u32 s52, s52, {8*3072}
            s_sub_u32 s53, s53, s55
            s_sub_u32 s54, s54, {8*2752}
            s_cmp_eq_u32 s49, 0
            s_cbranch_scc0 L_LW_START""")
    body('X', px)
    if cfg.tschunk:
        p.I(f"""s_memrealtime s[46:47]
               s_waitcnt lgkmcnt(0)
               v_writelane_b32 v20, s46, 8
               s_lshl_b32 s44, s2, 8
               s_add_u32 s44, s44, {WS_DBG}
               v_lshlrev_b32 v21, 2, v0
               s_mov_b64 exec, 0xffff
               buffer_store_dword v20, v21, s[28:31], s44 offen
               s_mov_b64 exec, -1""")
    p.I("s_branch L_L_END")
    p.L('L_LW_START')
    p.I("""s_cmp_eq_u32 s6, 0
           s_cbranch_scc0 L_LV_START""")
    body('W', pw)
    p.I("s_branch L_L_END")
    p.L('L_LV_START')
    pv = []
    for g in range(16):
        if g < 8 and g % 2 == 0: pv.append((16384 + (g//2)*1024, 4, 's[12:15]', 's62', 8*3072))
        pv.append((16384 + 8192 + g*1024, 7, 's[16:19]', 's63', 4*2752))
    body('V', pv)
    p.L('L_L_END')
    lds_inc(p, 'v12', L_ISS - MISC)
    p.I("""s_cmp_eq_u32 s49, 0
           s_cbranch_scc1 L_L_E4
           s_waitcnt vmcnt(%d)
           s_branch L_L_E5
        L_L_E4:
           s_waitcnt vmcnt(%d)
        L_L_E5:""" % ((8, 4) if cfg.twolevel else (0, 0)))
    lds_inc(p, 'v12', L_FULL - MISC + 28)
    p.I("s_waitcnt vmcnt(0)")
    lds_inc(p, 'v12', L_FUB - MISC + 28)
    spin_lds_ge(p, 'L_L_GI', 'v12', L_GISS - MISC, 1)
    T.stamp(p, 1)

AR = 16
RB = 64
KVC = 160
def ACC2(cg, rg): return 192 + 32*cg + 16*rg
NH = 22
NR = 12
NK = NH + 8

def tagcheck(p, acc, tmp, regs):
    for r, sg in regs: p.I(f"v_xor_b32 v{r}, {sg}, v{r}")
    rs = [r for r, _ in regs]
    p.I(f"v_or3_b32 v{acc}, v{rs[0]}, v{rs[1]}, v{rs[2]}" if len(rs) >= 3 else f"v_or_b32 v{acc}, v{rs[0]}, v{rs[1]}")
    k = 3
    while k < len(rs):
        if k + 1 < len(rs): p.I(f"v_or3_b32 v{acc}, v{acc}, v{rs[k]}, v{rs[k+1]}"); k += 2
        else: p.I(f"v_or_b32 v{acc}, v{acc}, v{rs[k]}"); k += 1

def reducer(p, cfg, Rb=64):
    p.I(f"""s_and_b32 s61, s4, 3
            s_lshr_b32 s63, s4, 2
            s_lshl_b32 s62, s5, 2
            s_add_u32 s62, s62, s61
            v_lshrrev_b32 v20, 4, v0
            v_and_b32 v21, 15, v0
            v_lshlrev_b32 v22, 11, v20
            v_lshl_add_u32 v22, v21, 4, v22
            v_and_b32 v23, 31, v0
            v_lshlrev_b32 v23, 4, v23
            s_mov_b32 s48, 0
            s_lshl_b32 s47, s62, 12
            s_lshl_b32 s46, s63, 10
            s_add_u32 s47, s47, s46
            s_add_u32 s47, s47, {WS_ZP}
        L_RD_RETRY:
            s_lshl_b32 s44, s62, 16
            s_lshl_b32 s45, s63, 9
            s_add_u32 s44, s44, s45
            s_add_u32 s44, s44, {WS_KVP}
            buffer_load_dwordx4 v[24:27], v23, s[28:31], s47 offen sc1
            buffer_load_dwordx4 v[28:31], v23, s[28:31], s47 offen offset:512 sc1""")
    for u in range(8):
        p.I(f"""buffer_load_dwordx4 {rng(Rb+8*u,4)}, v22, s[28:31], s44 offen sc1
                buffer_load_dwordx4 {rng(Rb+4+8*u,4)}, v22, s[28:31], s44 offen offset:256 sc1
                s_add_u32 s44, s44, 8192""")
    p.I("""s_cmp_eq_u32 s48, 0
           s_cbranch_scc0 L_RD_NOFLAG
           s_waitcnt vmcnt(18)""")
    f1_flag(p, 'R')
    p.I("""s_waitcnt vmcnt(1)
           s_branch L_RD_CHK
        L_RD_NOFLAG:
           s_waitcnt vmcnt(0)
        L_RD_CHK:""")
    regs = []
    for b in [Rb + 4*k for k in range(16)] + [24, 28]: regs += [(b+2, 's42'), (b+3, 's43')]
    tagcheck(p, 18, 19, regs)
    p.I(f"""v_cmp_ne_u32 vcc, 0, v18
            s_add_u32 s48, s48, 1
            s_cmp_eq_u64 vcc, 0
            s_cbranch_scc1 L_RD_OK
            s_cmp_ge_u32 s48, {SPIN_MAX >> 5}
            s_cbranch_scc1 L_RD_OK
            s_sleep {cfg.slp_red}
            s_branch L_RD_RETRY
        L_RD_OK:""")
    kv = (Rb, Rb+1, Rb+4, Rb+5)
    for u in range(1, 8):
        for r in kv: p.I(f"v_add_f32 v{r}, v{r}, v{r + 8*u}")
    for r in kv:
        half_sum(p, r, 1)
        p.I(f"""v_mov_b32 v1, v{r}
                v_permlane16_swap_b32 v{r}, v1
                v_add_f32 v{r}, v{r}, v1""")
    for r in (24, 25, 28, 29):
        for sh in (8, 4, 2, 1):
            p.I(f"v_add_f32_dpp v{r}, v{r}, v{r} row_ror:{sh} row_mask:0xf bank_mask:0xf")
        p.I(f"""v_mov_b32 v1, v{r}
                v_permlane16_swap_b32 v{r}, v1
                v_add_f32 v{r}, v{r}, v1""")
    p.I(f"""v_cmp_gt_u32 vcc, 16, v0
            v_cndmask_b32 v24, v24, v{kv[0]}, vcc
            v_cndmask_b32 v25, v25, v{kv[1]}, vcc
            v_cndmask_b32 v28, v28, v{kv[2]}, vcc
            v_cndmask_b32 v29, v29, v{kv[3]}, vcc
            v_cvt_pk_bf16_f32 v16, v24, v25
            v_cvt_pk_bf16_f32 v17, v28, v29
            v_mov_b32 v18, s42
            v_mov_b32 v19, s43
            v_subrev_u32 v24, 16, v0
            v_lshlrev_b32 v24, 2, v24
            v_add_u32 v24, 16, v24
            v_cndmask_b32 v24, v24, v0, vcc
            v_lshlrev_b32 v24, 4, v24
            s_lshl_b32 s44, s62, 11
            s_lshl_b32 s45, s63, 9
            s_add_u32 s44, s44, s45
            s_add_u32 s44, s44, {WS_KVF}
            s_mov_b64 exec, 0x3ffff
            buffer_store_dwordx4 v[16:19], v24, s[28:31], s44 offen sc1
            s_mov_b64 exec, -1""")

def phase2(p, cfg, T0):
    class _T:
        def stamp(self, p, idx):
            if not cfg.tsA: T0.stamp(p, idx)
    T = _T()
    def TA(idx):
        if cfg.tsA and not cfg.tsR: T0.stamp(p, idx)
    def TR(idx):
        if cfg.tsR and not cfg.tsT: T0.stamp(p, idx)
    def TT(idx):
        if cfg.tsT: T0.stamp(p, idx)
    srd(p, 20, 76, 1376*512*2)
    srd(p, 24, 68, 512*512*2)
    srd(p, 8, 64, 2048*512*2)
    srd(p, 32, 80, 2048*512*2)
    srd(p, 36, 78, 1024)
    p.I(f"""s_and_b32 s50, s49, 1
            s_lshr_b32 s51, s49, 1
            v_lshrrev_b32 v10, 3, v0
            v_and_b32 v11, 7, v0
            v_bfe_u32 v13, v0, 4, 1
            v_lshlrev_b32 v13, 2, v13
            v_xor_b32 v14, v11, v13
            v_lshlrev_b32 v14, 4, v14
            v_lshl_add_u32 v3, v10, 10, v14
            s_lshl_b32 s44, s51, 10
            v_lshlrev_b32 v2, 4, v0
            v_add_u32 v2, s44, v2
            v_xor_b32 v15, 0x400, v2
            v_mov_b32 v12, {MISC}""")
    p.I(f"""v_lshrrev_b32 v10, 5, v0
            v_bfe_u32 v11, v0, 2, 2
            v_lshl_add_u32 v13, v10, 2, v11
            v_lshlrev_b32 v13, 7, v13
            v_lshrrev_b32 v14, 1, v11
            v_xor_b32 v14, s50, v14
            v_lshl_add_u32 v13, v14, 6, v13
            v_bfe_u32 v14, v0, 4, 1
            v_lshl_add_u32 v13, v14, 5, v13
            v_and_b32 v14, 3, v0
            v_lshl_add_u32 v13, v14, 3, v13""")
    p.I(f"""s_lshl_b32 s44, s49, 13
            s_add_u32 s52, s44, {MSEG}
            s_mul_i32 s44, s49, 10240
            s_add_u32 s53, s44, {2*SLOT}
            s_mov_b32 s54, s44
            s_add_u32 s55, s44, {SLOT}""")
    for k in range(4):
        p.I(f"""v_add_u32 v{4+2*k}, s{52+k}, v13
                v_xor_b32 v{5+2*k}, 64, v{4+2*k}""")
    cells = [(0, n) for n in range(4)] + [(1, n) for n in range(5)] + [(2, n) for n in range(5)] + [(3, n) for n in range(5)]
    Rcell = cells[:NR]
    Lcell = cells[NR:19] + cells[0:11]
    p.I(f"""s_mul_i32 s56, s49, {22*16*1024}
            s_lshl_b32 s44, s41, 7
            s_add_u32 s56, s56, s44
            s_lshl_b32 s57, s49, 17
            s_add_u32 s57, s57, s44""")
    p.I(f"""s_and_b32 s44, s40, 3
            s_lshl_b32 s44, s44, 1
            s_add_u32 s44, s44, s41
            s_and_b32 s82, s44, 7
            s_mul_i32 s83, s82, 22
            s_lshr_b32 s83, s83, 3""")
    if not cfg.rot2:
        p.I("s_mov_b32 s82, 0\n s_mov_b32 s83, 0")
    p.I("s_mov_b32 s61, s83\n s_mov_b32 s62, s82")
    def next_idx(reg, n):
        p.I(f"""s_add_u32 {reg}, {reg}, 1
                s_cmp_eq_u32 {reg}, {n}
                s_cselect_b32 {reg}, 0, {reg}""")
    def issue(kidx, cell):
        reg, n = cell
        if kidx < NH: S, sb, ir, nn = 's[20:23]', 's56', 's61', NH
        else: S, sb, ir, nn = 's[24:27]', 's57', 's62', 8
        p.I(f"""s_lshl_b32 s44, {ir}, 14
                s_add_u32 s44, s44, {sb}
                s_add_u32 m0, s{52+reg}, {n*2048}
                s_add_u32 s45, s44, 8192
                buffer_load_dwordx4 v3, {S}, s44 offen lds
                s_add_u32 m0, s{52+reg}, {n*2048 + 1024}""")
        next_idx(ir, nn)
        p.I(f"buffer_load_dwordx4 v3, {S}, s45 offen lds")
    def readB(cell, dst):
        reg, n = cell
        out = []
        for cg in range(2):
            a = 4 + 2*reg + cg
            out.append(f"ds_read_b64_tr_b16 {rng(dst+4*cg,2)}, v{a} offset:{n*2048}")
            out.append(f"ds_read_b64_tr_b16 {rng(dst+4*cg+2,2)}, v{a} offset:{n*2048+1024}")
        return out
    kcell = {}
    for k in range(0, 4): kcell[k] = cells[k]
    for k in range(4, 9): kcell[k] = cells[k]
    for k in range(9, 12): kcell[k] = cells[k - 9]
    Lplace = [cells[3]] + cells[4:9] + cells[9:14] + cells[14:19] + cells[0:2]
    for n, c in enumerate(Lplace): kcell[12 + n] = c
    nis = [0]
    def iss(k): issue(k, kcell[k]); nis[0] += 2
    def landed(nk):
        p.I(f"s_waitcnt vmcnt({nis[0] - 2*nk})")
    def rd(ks):
        c = 0
        for k in ks:
            for x in readB(kcell[k], RB + 8*k): p.I(x); c += 1
            if c >= 12: p.I("s_waitcnt lgkmcnt(4)"); c = 4
        p.I("s_waitcnt lgkmcnt(0)")
    for k in range(0, 4): iss(k)
    spin_lds_ge(p, 'L_P2_W5', 'v12', L_FREE - MISC + 20, 4)
    for k in range(4, 9): iss(k)
    landed(4); rd(range(0, 4))
    for k in range(9, 13): iss(k)
    T.stamp(p, 2)
    landed(9); rd(range(4, 9))
    landed(12); rd(range(9, 12))
    p.I(f"""v_and_b32 v1, 31, v0
            s_lshl_b32 s44, s40, 6
            s_lshl_b32 s45, s51, 5
            s_add_u32 s44, s44, s45
            v_add_u32 v1, s44, v1
            v_lshlrev_b32 v1, 10, v1
            s_lshl_b32 s44, s41, 7
            s_lshl_b32 s45, s50, 6
            s_add_u32 s63, s44, s45
            v_lshrrev_b32 v13, 5, v0
            v_lshl_add_u32 v14, v13, 3, v1
            v_lshlrev_b32 v13, 3, v13""")
    for g in range(4):
        p.I(f"buffer_load_dwordx2 {rng(32+2*g,2)}, v14, s[8:11], s63 offen offset:{g*16}")
        p.I(f"buffer_load_dwordx2 {rng(40+2*g,2)}, v13, s[36:39], s63 offen offset:{g*16}")
    for r in range(208, 256): p.I(f"v_mov_b32 v{r}, 0")
    p.I("s_mov_b32 s46, 0xffff0000\n s_waitcnt vmcnt(0)")
    for g in range(4):
        for hlf in range(2):
            xr = 32 + 2*g + hlf; br = 40 + 2*g + hlf; o = 192 + 4*g + 2*hlf
            p.I(f"""v_lshlrev_b32 v48, 16, v{xr}
                    v_and_b32 v49, s46, v{xr}
                    v_lshlrev_b32 v50, 16, v{br}
                    v_and_b32 v51, s46, v{br}
                    v_add_f32 v{o}, v48, v50
                    v_add_f32 v{o+1}, v49, v51""")
    spin_lds_ge(p, 'L_P2_WE', 'v12', L_EPI - MISC, 4, sleep=cfg.slp_lds and 2)
    for k in range(13, 13 + cfg.bgap): iss(k)
    Bnext = 13 + cfg.bgap
    T.stamp(p, 3)
    G0 = RB + 16
    def kv_loads():
        p.I(f"""v_lshrrev_b32 v14, 5, v0
                v_lshlrev_b32 v14, 9, v14
                v_and_b32 v13, 31, v0
                v_lshl_add_u32 v14, v13, 4, v14
                s_lshl_b32 s46, s49, 14
                s_add_u32 s46, s46, {WS_KVF}
                s_mov_b32 s47, s82
                s_mov_b32 exec_lo, 0x00ffffff
                s_mov_b32 exec_hi, 0x00ffffff""")
        for hd in range(8):
            p.I(f"""s_lshl_b32 s44, s47, 11
                    s_add_u32 s44, s44, s46
                    buffer_load_dwordx4 {rng(G0+8*hd,4)}, v14, s[28:31], s44 offen sc1
                    buffer_load_dwordx4 {rng(G0+8*hd+4,4)}, v14, s[28:31], s44 offen offset:1024 sc1""")
            next_idx('s47', 8)
        p.I("s_mov_b64 exec, -1")
    def kv_validate():
        p.I("s_mov_b32 s48, 0")
        p.L('L_KV_CHK')
        regs = []
        for hd in range(8):
            for b in (G0+8*hd, G0+8*hd+4): regs += [(b+2, 's42'), (b+3, 's43')]
        tagcheck(p, 13, 1, regs)
        p.I(f"""v_cmp_ne_u32 vcc, 0, v13
                s_and_b32 vcc_lo, vcc_lo, 0x0011ffff
                s_and_b32 vcc_hi, vcc_hi, 0x0011ffff
                s_add_u32 s48, s48, 1
                s_cmp_eq_u64 vcc, 0
                s_cbranch_scc1 L_KV_OK
                s_cmp_ge_u32 s48, {SPIN_MAX >> 5}
                s_cbranch_scc1 L_KV_OK
                s_sleep {cfg.slp_kv}""")
        kv_loads()
        p.I("""s_waitcnt vmcnt(0)
               s_branch L_KV_CHK
            L_KV_OK:""")
        for hd in range(8):
            p.I(f"""v_mov_b32 v{KVC+4*hd}, v{G0+8*hd}
                    v_mov_b32 v{KVC+4*hd+1}, v{G0+8*hd+1}
                    v_mov_b32 v{KVC+4*hd+2}, v{G0+8*hd+4}
                    v_mov_b32 v{KVC+4*hd+3}, v{G0+8*hd+5}""")
    p.I(f"""v_and_b32 v14, 31, v0
            s_lshl_b32 s44, s40, 5
            v_add_u32 v14, s44, v14
            v_mul_u32_u24 v14, {FS}, v14
            v_add_u32 v14, {WS_F1}, v14""")
    if cfg.onepoll:
        p.I("""s_cmp_eq_u32 s49, 0
               s_cbranch_scc0 L_P2_F1W""")
        poll_flags(p, 'L_P2_F1', 'v14', 16, 64, sleep=cfg.slp_f1)
        p.I(f"""v_mov_b32 v1, 1
                ds_write_b32 v12, v1 offset:{L_F1 - MISC}
                s_branch L_P2_F1D
            L_P2_F1W:""")
        spin_lds_ge(p, 'L_P2_F1S', 'v12', L_F1 - MISC, 1, sleep=cfg.slp_lds and 1)
        p.I("s_waitcnt vmcnt(0)")
        p.L('L_P2_F1D')
    else:
        poll_flags(p, 'L_P2_F1', 'v14', 16, 64, sleep=cfg.slp_f1)
    T.stamp(p, 4); TA(1)
    p.I(f"""s_mul_i32 s58, s40, {HF_IB}
            s_add_u32 s58, s58, {WS_HF}
            s_mul_i32 s59, s49, 22
            s_mul_i32 s60, s40, {PQ_IB}
            s_lshl_b32 s44, s49, 14
            s_add_u32 s60, s60, s44
            s_add_u32 s60, s60, {WS_PQ}
            s_mov_b32 s84, s83
            s_mov_b32 s85, s82""")
    sc = 'sc1' if cfg.asc1 else ''
    def issueA(u):
        slot = AR + 8*(u % 6)
        if u < NH:
            p.I(f"""s_add_u32 s44, s59, s84
                    s_min_u32 s44, s44, 85
                    s_lshl_b32 s44, s44, 11
                    s_add_u32 s44, s44, s58""")
            next_idx('s84', NH)
        else:
            p.I(f"""s_lshl_b32 s44, s85, 11
                    s_add_u32 s44, s44, s60""")
            next_idx('s85', 8)
        p.I(f"""buffer_load_dwordx4 {rng(slot,4)}, v2, s[28:31], s44 offen {sc}
                buffer_load_dwordx4 {rng(slot+4,4)}, v15, s[28:31], s44 offen {sc}""")
    vm = []
    Bq = list(range(Bnext, 30))
    for u in range(6):
        issueA(u); vm += [('A', u)] * 2
    def wait_for(tag):
        cand = [i for i, t in enumerate(vm) if t == tag]
        if not cand: return
        n = len(vm) - 1 - max(cand)
        p.I(f"s_waitcnt vmcnt({n})")
        del vm[:max(cand) + 1]
    LB = [RB, RB + 8]
    def CBUF(n): return RB + 16 + 16*(n % 3)
    def OFR(hd, rg): return RB + 64 + 8*(hd & 1) + 4*rg
    XRES = RB + 80; BRES = RB + 88
    for u in range(NH):
        wait_for(('A', u))
        slot = AR + 8*(u % 6)
        if u < NR: B = RB + 8*u
        else:
            B = LB[u & 1]
            p.I("s_waitcnt lgkmcnt(0)")
        nxt = []
        if u + 1 >= NR:
            wait_for(('B', u + 1))
            nxt = readB(kcell[u + 1], LB[(u + 1) & 1])
        m = 0
        for cg in range(2):
            for rg in range(2):
                a = ACC2(cg, rg)
                p.I(f"v_mfma_f32_32x32x16_bf16 {rng(a,16)}, {rng(B+4*cg,4)}, {rng(slot+4*rg,4)}, {rng(a,16)}")
                if m < len(nxt): p.I(nxt[m])
                m += 1
        if u == cfg.f2_issue:
            p.I(f"""v_and_b32 v160, 15, v0
                    s_lshl_b32 s44, s40, 4
                    v_add_u32 v160, s44, v160
                    v_mul_u32_u24 v160, {FS}, v160
                    v_add_u32 v160, {WS_F2}, v160
                    buffer_load_dwordx2 v[162:163], v160, s[28:31], 0 offen sc1""")
            vm.append(('F2', 0))
        if u + 6 == NH:
            wait_for(('F2', 0))
            p.I(f"""v_xor_b32 v162, s42, v162
                    v_xor_b32 v163, s43, v163
                    v_or_b32 v162, v162, v163
                    v_cmp_ne_u32 vcc, 0, v162
                    s_cmp_eq_u64 vcc, 0
                    s_cbranch_scc1 L_P2_F2OK""")
            poll_flags(p, 'L_P2_F2', 'v160', 162, 64, sleep=1)
            p.L('L_P2_F2OK')
        if u + 6 < NK:
            issueA(u + 6); vm.extend([('A', u + 6)] * 2)
        if Bq:
            k = Bq.pop(0)
            issue(k, kcell[k]); vm.extend([('B', k)] * 2)
        if u in (2, 7, 13, 21): TA({2: 3, 7: 4, 13: 5, 21: 6}[u])
        if u == cfg.kv_issue:
            kv_loads(); vm.extend([('K', 0)] * 16)
        if u == NH - 1:
            TT(1)
            wait_for(('K', 0))
            kv_validate()
            TT(2)
        if u == 19:
            p.I(f"""v_and_b32 v10, 31, v0
                    s_lshl_b32 s44, s40, 6
                    s_lshl_b32 s45, s51, 5
                    s_add_u32 s44, s44, s45
                    v_add_u32 v10, s44, v10
                    v_lshlrev_b32 v1, 10, v10
                    s_lshl_b32 s44, s41, 7
                    s_lshl_b32 s45, s50, 6
                    s_add_u32 s63, s44, s45
                    v_lshrrev_b32 v13, 5, v0
                    v_lshl_add_u32 v12, v13, 4, v1
                    v_lshl_add_u32 v14, v13, 3, v1
                    v_lshlrev_b32 v13, 3, v13""") if False else None
    T.stamp(p, 5)
    p.I(f"""v_and_b32 v12, 31, v0
            s_lshl_b32 s44, s40, 6
            s_lshl_b32 s45, s51, 5
            s_add_u32 s44, s44, s45
            v_add_u32 v12, s44, v12
            v_lshlrev_b32 v12, 10, v12
            v_lshrrev_b32 v13, 5, v0
            v_lshl_add_u32 v12, v13, 4, v12""")
    def mA(n):
        hd, rg = n >> 1, n & 1
        u = NH + hd
        slot = AR + 8*(u % 6)
        pre = []
        if rg == 0: wait_for(('A', u))
        p.I(f"v_mfma_f32_32x32x16_bf16 {rng(CBUF(n),16)}, {rng(KVC+4*hd,4)}, {rng(slot+4*rg,4)}, 0")
        if rg == 1 and u + 6 < NK:
            issueA(u + 6); vm.extend([('A', u + 6)] * 2)
    def vB(n):
        hd, rg = n >> 1, n & 1
        c = CBUF(n); o = OFR(hd, rg)
        L = [f"v_add_f32 v{c+8}, {fhex(1e-6)}, v{c+8}", f"v_rcp_f32 v{c+8}, v{c+8}"]
        for k in range(4):
            L += [f"v_mul_f32 v{c+2*k}, v{c+2*k}, v{c+8}", f"v_mul_f32 v{c+2*k+1}, v{c+2*k+1}, v{c+8}"]
        for k in range(4): L.append(f"v_cvt_pk_bf16_f32 v{o+k}, v{c+2*k}, v{c+2*k+1}")
        return L
    def mC(hd, m):
        u = NH + hd
        B = LB[u & 1]
        rg, cg = m >> 1, m & 1
        if m == 0: p.I("s_waitcnt lgkmcnt(0)")
        a = ACC2(cg, rg); o = OFR(hd, rg)
        p.I(f"v_mfma_f32_32x32x16_bf16 {rng(a,16)}, {rng(B+4*cg,4)}, {rng(o,4)}, {rng(a,16)}")
        if u + 1 < NK:
            if m == 0: wait_for(('B', u + 1))
            p.I(readB(kcell[u + 1], LB[(u + 1) & 1])[m])
    XB = RB + 80
    mA(0); mA(1)
    for h in range(9):
        v0_ = vB(2*h) if h < 8 else []
        v1_ = vB(2*h + 1) if h < 8 else []
        hasC = h >= 1
        if hasC: mC(h - 1, 0)
        for x in v0_[0:5]: p.I(x)
        if hasC: mC(h - 1, 1)
        for x in v0_[5:10]: p.I(x)
        if hasC: mC(h - 1, 2)
        for x in v0_[10:14]: p.I(x)
        if h < 7: mA(2*h + 2)
        for x in v1_[0:5]: p.I(x)
        if hasC: mC(h - 1, 3)
        for x in v1_[5:14]: p.I(x)
        if h < 7: mA(2*h + 3)
    T.stamp(p, 6); TA(7); TT(3)
    p.I("""v_lshlrev_b32 v13, 4, v0
           v_add_u32 v14, s55, v13
           v_add_u32 v1, s54, v13""")
    OWN = ACC2(0, 0)
    wr = []
    for k in (1, 2, 3):
        a = ACC2(k & 1, k >> 1)
        for g in range(4):
            if k < 3: wr.append(f"ds_write_b128 v14, {rng(a+4*g,4)} offset:{(k-1)*4096 + g*1024}")
            else:     wr.append(f"ds_write_b128 v1, {rng(a+4*g,4)} offset:{g*1024}")
    for w in wr: p.I(w)
    RD = 24
    for k in (1, 2, 3):
        p.I(f"""s_xor_b32 s44, s49, {k}
                s_mul_i32 s44, s44, 10240
                s_add_u32 s44, s44, {SLOT + (k-1)*4096 if k < 3 else 0}
                v_add_u32 v{4+k}, s44, v13""")
    p.I("s_waitcnt lgkmcnt(0)")
    TT(4)
    p.I("s_barrier")
    TT(5)
    for k in (1, 2, 3):
        for g in range(4): p.I(f"ds_read_b128 {rng(RB+16*(k-1)+4*g,4)}, v{4+k} offset:{g*1024}")
    p.I("s_waitcnt lgkmcnt(8)")
    for r in range(16): p.I(f"v_add_f32 v{OWN+r}, v{OWN+r}, v{RB+r}")
    p.I("s_waitcnt lgkmcnt(4)")
    for r in range(16): p.I(f"v_add_f32 v{OWN+r}, v{OWN+r}, v{RB+16+r}")
    p.I("s_waitcnt lgkmcnt(0)")
    for k in range(8):
        p.I(f"""v_add_f32 v{OWN+2*k}, v{OWN+2*k}, v{RB+32+2*k}
                v_add_f32 v{OWN+2*k+1}, v{OWN+2*k+1}, v{RB+32+2*k+1}
                v_cvt_pk_bf16_f32 v{16+k}, v{OWN+2*k}, v{OWN+2*k+1}""")
    p.I(f"""v_permlane32_swap_b32 v16, v18
            v_permlane32_swap_b32 v17, v19
            v_permlane32_swap_b32 v20, v22
            v_permlane32_swap_b32 v21, v23
            buffer_store_dwordx4 v[16:19], v12, s[32:35], s63 offen {cfg.outflag}
            buffer_store_dwordx4 v[20:23], v12, s[32:35], s63 offen offset:32 {cfg.outflag}""")
    T.stamp(p, 7); TT(6)
    if cfg.tsT: p.I("s_waitcnt vmcnt(0)"); TT(7)
    if cfg.fixdur:
        p.I(f"""L_FIXDUR:
                s_memrealtime s[98:99]
                s_waitcnt lgkmcnt(0)
                s_sub_u32 s98, s98, s100
                s_cmp_lt_u32 s98, {cfg.fixdur}
                s_cbranch_scc1 L_FIXDUR""")
    dump_ts(p, cfg, T0, 8)

if __name__ == '__main__':
    cfg = Cfg()
    out = f'cdna_kernels/{NAME}.s'
    for a in sys.argv[1:]:
        if a == 'ts': cfg.ts = True
        elif a.startswith('rot='): cfg.rot = a[4:]
        elif a.startswith('fullpt='): cfg.fullpt = int(a[7:])
        elif a.startswith('out='): out = a[4:]
        elif a == 'fullwait0': cfg.fullwait0 = True
        elif a == 'dbgstats': cfg.dbgstats = True
        elif a == 'tschunk': cfg.tschunk = True
        elif a == 'norot2': cfg.rot2 = False
        elif a.startswith('fixdur='): cfg.fixdur = int(a[7:])
        elif a.startswith('outflag='): cfg.outflag = a[8:].replace('+', ' ')
        elif a == 'nosync': cfg.nosync = True
        elif a == 'cntspin': cfg.cntspin = True; cfg.tschunk = True
        elif a == 'tsA': cfg.tsA = True
        elif a == 'tsR': cfg.tsR = True; cfg.tsA = True
        elif a == 'tsT': cfg.tsT = True; cfg.tsA = True; cfg.tsR = True
        elif a.startswith('slp_') or a.startswith('kv_issue') or a.startswith('bwait') or a.startswith('biss') or a.startswith('twolevel') or a.startswith('onepoll') or a.startswith('f2_') or a.startswith('bgap') or a.startswith('flagpos') or a.startswith('freepos') or a.startswith('bdepth') or a.startswith('g0chunk'): k, v = a.split('='); setattr(cfg, k, int(v))
        elif a == 'noasc1': cfg.asc1 = False
        elif a == 'tscyc': cfg.tscyc = True
        elif a == 'tsallcyc': cfg.tsallcyc = True
        elif a == 'dbgout': cfg.dbgout = True; cfg.ts = True
        elif a == 'nodot': cfg.nodot = True
    p = build(cfg)
    s = p.text()
    open(out, 'w').write(s)
    print('written', out, p.stats)
```
